```python
import torch

def _softmax(x, axis=-1):
    return torch.softmax(x, dim=axis)
def _gelu(x):
    return torch.nn.functional.gelu(x, approximate="tanh")
def _silu(x):
    return torch.nn.functional.silu(x)
def _sigmoid(x):
    return torch.sigmoid(x)
def _layernorm(x, axis=-1, eps=1e-5):
    m = x.mean(dim=axis, keepdim=True)
    v = x.var(dim=axis, keepdim=True, unbiased=False)
    return (x - m) / torch.sqrt(v + eps)
def _scatter_add(tgt, idx, src, axis=0):
    return tgt.clone().index_add_(axis, idx, src)
def _segment_sum(src, seg, n):
    out = torch.zeros((n,) + src.shape[1:], dtype=src.dtype)
    return out.index_add_(0, seg, src)
def _pad(x, pw):
    flat = tuple(v for pair in reversed(pw) for v in pair)
    return torch.nn.functional.pad(x, flat)

kernel_name = 'gated_mix__sliding_block_cached__dense_activation_gelu__decode'

def setup_inputs():

    _w = (lambda a: (lambda t: t.to(torch.bfloat16) if t.is_floating_point() else t)(torch.as_tensor(a)))
    def _A_setup():
        B, Sq, D = 1, 1, 576
        Hq, Hkv, Sk, Dh = 32, 16, 65536, 128
        assert Hq % Hkv == 0, (Hq, Hkv)
        return {
            "x": _w((lambda *s: torch.randn(*s, dtype=torch.bfloat16) * 0.05)(B, Sq, D)),
            "k_cache": _w((lambda *s: torch.randn(*s, dtype=torch.bfloat16) * 3.2)(B, Hkv, Sk, Dh)),
            "v_cache": _w((lambda *s: torch.randn(*s, dtype=torch.bfloat16) * 0.1)(B, Hkv, Sk, Dh)),
            "wq": _w((lambda *s: torch.randn(*s, dtype=torch.bfloat16) * 3.2)(D, Hq * Dh) * (D ** -0.5)),
            "wo": _w((lambda *s: torch.randn(*s, dtype=torch.bfloat16) * 0.1)(Hq * Dh, D) * ((Hq * Dh) ** -0.5)),
        }
    _A_in = _A_setup()

    def _B_setup():
        B, S, D, F = 1, 1, 576, 4608
        return {
            "x": _w((lambda *s: torch.randn(*s, dtype=torch.bfloat16) * 0.05)(B, S, D)),
            "w1": _w((lambda *s: torch.randn(*s, dtype=torch.bfloat16) * 0.1)(D, F) * (D ** -0.5)),
            "b1": _w((lambda *s: torch.randn(*s, dtype=torch.bfloat16) * 0.1)(F) * 0.01),
            "w2": _w((lambda *s: torch.randn(*s, dtype=torch.bfloat16) * 0.1)(F, D) * (F ** -0.5)),
            "b2": _w((lambda *s: torch.randn(*s, dtype=torch.bfloat16) * 0.05)(D) * 0.01),
        }
    _B_in = _B_setup()

    return {
        "A_x": _A_in["x"],
        "A_k_cache": _A_in["k_cache"],
        "A_v_cache": _A_in["v_cache"],
        "A_wq": _A_in["wq"],
        "A_wo": _A_in["wo"],
        "B_x": _B_in["x"],
        "B_w1": _B_in["w1"],
        "B_b1": _B_in["b1"],
        "B_w2": _B_in["w2"],
        "B_b2": _B_in["b2"],
        "gate_w": _w((lambda *s: torch.randn(*s, dtype=torch.bfloat16) * 0.05)(576) * 16.0),
    }

def reference(A_x, A_k_cache, A_v_cache, A_wq, A_wo, B_x, B_w1, B_b1, B_w2, B_b2, gate_w):
    def _A_ref(x, k_cache, v_cache, wq, wo):
        B, Sq, D = x.shape
        Hq, Dh = 32, 128
        Hkv, Sk = k_cache.shape[1], k_cache.shape[2]
        W = min(4096, max(256, Sk // 4))
        rep = Hq // Hkv
        q = (lambda x, *d: x.permute(*d))((x @ wq).reshape(B, Sq, Hq, Dh), 0, 2, 1, 3)
        k = (lambda x, n, axis: torch.repeat_interleave(x, n, dim=axis))(k_cache[:, :, Sk - W:, :], rep, axis=1)
        v = (lambda x, n, axis: torch.repeat_interleave(x, n, dim=axis))(v_cache[:, :, Sk - W:, :], rep, axis=1)
        scores = torch.einsum("bhqd,bhkd->bhqk", q, k) * (Dh ** -0.5)
        p = _softmax(scores, axis=-1)
        o = torch.einsum("bhqk,bhkd->bhqd", p, v)
        return (lambda x, *d: x.permute(*d))(o, 0, 2, 1, 3).reshape(B, Sq, Hq * Dh) @ wo

    def _B_ref(x, w1, b1, w2, b2):
        h = torch.einsum("bsd,df->bsf", x, w1) + b1
        h = _gelu(h)
        return torch.einsum("bsf,fd->bsd", h, w2) + b2

    x = A_x
    g = _sigmoid((x * gate_w).sum(-1, keepdims=True))
    a = _A_ref(x, A_k_cache, A_v_cache, A_wq, A_wo)
    b = _B_ref(x, B_w1, B_b1, B_w2, B_b2)
    return g * a + (1 - g) * b
```

```python
import sys, os
sys.path.insert(0, 'bench')
from common import *
NAME = 'gated_mix__sliding_block_cached__dense_activation_gelu__decode_kernel'

WS_E   = 0
WS_HA  = 0x1000
WS_HBO = 0xA0000
WS_HBS = 0xE0000
WS_HC  = 0xF0000
WS_STAMP = 0x20000000
L_K  = 0
L_Q  = 65536
L_H  = L_Q + 512
L_G  = L_H + 64
L_OC = L_G + 64
L_ST = L_OC + 64
L_OP = L_ST + 64 + 192
L_FC = L_OP + 4096
LDS_BYTES = L_FC + 1024
assert L_OP % 16 == 0

LOG2E = 1.4426950408889634
import struct
def f2u(x): return struct.unpack('<I', struct.pack('<f', x))[0]
CSC = f2u(LOG2E / (128 ** 0.5))

class Path:
    def __init__(self, a, stamps):
        self.a = a; self.n = 0; self.st = 0; self.stamps = stamps
    def vm(self, text):
        self.a(text); self.n += 1; return self.n - 1
    def wait(self, idx):
        k = self.n - 1 - idx
        assert 0 <= k <= 63, k
        self.a(f's_waitcnt vmcnt({k})')
    def cap(self, c):
        if c and self.n >= c:
            self.a(f's_waitcnt vmcnt({c-1})')
    def stamp(self):
        if self.stamps:
            assert self.st < 12
            self.a(f's_memrealtime s[{76+2*self.st}:{77+2*self.st}]'); self.st += 1

def vr(b, n=4): return f'v[{b}:{b+n-1}]'

def gen(path, stamps=False, cap=8, l1_after_k=8, s_after_v=16, wo_before_s=True, ldflag='nt'):
    a = Asm()
    SA, SB, SC, SD, SW = 32, 36, 40, 44, 48
    def srd(slot, ptr, size):
        a(f's_mov_b64 s[{slot}:{slot+1}], s[{ptr}:{ptr+1}]\ns_mov_b32 s{slot+2}, {size}\ns_mov_b32 s{slot+3}, 0x20000')
    def S(slot): return f's[{slot}:{slot+3}]'
    sT = 60
    sSEL = [61, 62, 63, 64]
    sG01, sG2, sG3 = 65, 66, 67
    sTO = 59
    a('s_cmp_ge_u32 s2, 256\ns_cbranch_scc1 L_end')
    if stamps: a('s_memrealtime s[74:75]')
    a('s_load_dwordx16 s[4:19], s[0:1], 0\ns_load_dwordx8 s[20:27], s[0:1], 64\ns_load_dwordx4 s[28:31], s[0:1], 96')
    a('v_lshrrev_b32 v1, 6, v0\nv_and_b32 v0, 63, v0')
    a('v_readfirstlane_b32 s3, v1')
    vG, vI = 9, 10
    a(f'v_lshrrev_b32 v{vG}, 4, v0\nv_and_b32 v{vI}, 15, v0')
    a('s_cmp_eq_u32 s3, 4\ns_cbranch_scc1 L_service')

    def selectors():
        a(f'v_and_b32 v11, 1, v{vI}\nv_cmp_eq_u32 vcc, 1, v11')
        a('v_mov_b32 v12, 0x0c0c0100\nv_mov_b32 v13, 0x01000c0c')
        a('v_cndmask_b32 v12, v12, v13, vcc')
        a('v_mov_b32 v14, 0x0c0c0302\nv_mov_b32 v13, 0x03020c0c')
        a('v_cndmask_b32 v13, v14, v13, vcc')
        a(f'v_bfe_u32 v11, v{vI}, 1, 2')
        a('v_mov_b32 v14, 0x0c0c0c0c')
        for r in range(4):
            a(f'v_cmp_eq_u32 vcc, {r}, v11\ns_nop 1')
            a(f'v_cndmask_b32 v{1+r}, v14, v12, vcc\nv_cndmask_b32 v{5+r}, v14, v13, vcc')
    def consts():
        for k in range(4):
            a(f's_mov_b32 s{sSEL[k]}, {0x07060500 + k:#x}')
        a(f's_mov_b32 s{sG01}, 0x0c0c0400\ns_mov_b32 s{sG2}, 0x0c040100\ns_mov_b32 s{sG3}, 0x04020100')
    def buildA(dst, src, hi):
        for r in range(4):
            a(f'v_perm_b32 v{dst+r}, v{src}, v{src}, v{(5 if hi else 1)+r}')
    def tag4(b, vT):
        for k in range(4):
            a(f'v_perm_b32 v{b+k}, v{b+k}, v{vT}, s{sSEL[k]}')
    def gtag(dst, b):
        a(f'v_perm_b32 v{dst}, v{b+1}, v{b}, s{sG01}\nv_perm_b32 v{dst}, v{b+2}, v{dst}, s{sG2}\nv_perm_b32 v{dst}, v{b+3}, v{dst}, s{sG3}')
    def xrow(op, v, t):
        a(f'v_mov_b32 v{t}, v{v}\ns_nop 1\nv_permlane16_swap_b32 v{v}, v{t}\ns_nop 1\n{op} v{v}, v{v}, v{t}')
        a(f'v_mov_b32 v{t}, v{v}\ns_nop 1\nv_permlane32_swap_b32 v{v}, v{t}\ns_nop 1\n{op} v{v}, v{v}, v{t}')
    def rowred(op, regs, rots=(8, 4, 2, 1)):
        for rot in rots:
            if len(regs) < 3: a('s_nop 1')
            for v in regs:
                a(f'{op}_dpp v{v}, v{v}, v{v} row_ror:{rot} row_mask:0xf bank_mask:0xf')
    def dump_stamps(P, widx):
        if not stamps: return
        while P.st < 12: P.stamp()
        a('s_waitcnt lgkmcnt(0)')
        a(f's_mul_i32 s52, s2, 5\ns_add_u32 s52, s52, s3\ns_mul_i32 s52, s52, 128\ns_add_u32 s52, s52, {WS_STAMP}')
        a('s_mov_b64 exec, 1\nv_mov_b32 v1, 0')
        for i in range(13):
            a(f'v_mov_b32 v4, s{74+2*i}\nv_mov_b32 v5, s{75+2*i}')
            a(f'buffer_store_dwordx2 v[4:5], v1, {S(SW)}, s52 offen offset:{i*8}\ns_nop 1')

    P = Path(a, stamps)
    vXO, vL1, vW2o, vWOo = 15, 16, 17, 18
    vKo = [19, 20, 21, 22]; vVo = [23, 24, 25, 26]; vKr = [27, 28, 29, 30]
    vT = 31
    X = 32
    A0, A1 = 40, 44
    ACC = 48
    DA, DB = 52, 56
    TMP = 60
    W = 68
    V = 108
    QB = 172
    SS = 188
    KF = 204
    NV = 236
    a('s_and_b32 s52, s2, 63\ns_lshl_b32 s52, s52, 2\ns_add_u32 s52, s52, s3')
    a('s_mul_i32 s53, s52, 4370\ns_lshr_b32 s53, s53, 16')
    a('s_mul_i32 s54, s53, 15\ns_sub_u32 s54, s52, s54')
    a('s_lshr_b32 s55, s2, 6')
    a('s_cmp_lt_u32 s53, 8\ns_cselect_b32 s56, 8, 9\ns_cselect_b32 s57, 0, 8')
    a('s_sub_u32 s57, s53, s57\ns_mul_i32 s58, s56, s55\ns_add_u32 s57, s57, s58\ns_lshl_b32 s57, s57, 8')
    a('s_lshl_b32 s56, s56, 10')
    a(f's_mul_i32 s{SA+2}, s56, 576\ns_cmp_eq_u32 s53, 17\ns_cselect_b32 s{SA+2}, 0, s{SA+2}\ns_mov_b32 s{SA+3}, 0x20000')
    a(f's_mov_b32 s{SB+2}, 1152\ns_mov_b32 s{SB+3}, 0x20000')
    a('s_mul_i32 s58, s54, 40')
    a(f'v_mad_u32_u24 v11, v{vG}, 10, s58')
    a(f'v_lshlrev_b32 v{vXO}, 1, v11')
    a(f'v_mul_lo_u32 v{vL1}, v11, s56')
    a(f'v_lshl_add_u32 v{vL1}, v{vI}, 4, v{vL1}\nv_add_u32 v{vL1}, s57, v{vL1}')
    a(f's_mul_i32 s68, s55, 18\ns_add_u32 s68, s68, s53\ns_lshl_b32 s68, s68, 4\ns_add_u32 s68, s68, s54\ns_lshl_b32 s68, s68, 9\ns_add_u32 s68, s68, {WS_HA}')
    a('s_cmp_lt_u32 s53, 8')
    a('s_waitcnt lgkmcnt(0)')
    a(f's_cselect_b32 s{SA}, s10, s16\ns_cselect_b32 s{SA+1}, s11, s17')
    a(f's_mov_b64 s[{SB}:{SB+1}], s[4:5]')
    x0 = P.vm(f'buffer_load_dwordx4 {vr(X)}, v{vXO}, {S(SB)}, 0 offen')
    x1 = P.vm(f'buffer_load_dword v{X+4}, v{vXO}, {S(SB)}, 0 offen offset:16')
    l1 = []
    a('s_mov_b32 s58, 0')
    for i in range(10):
        l1.append(P.vm(f'buffer_load_dwordx4 {vr(W+4*i)}, v{vL1}, {S(SA)}, s58 offen {ldflag}'))
        if i < 9: a('s_add_u32 s58, s58, s56')
    a('s_load_dword s60, s[30:31], 0')
    P.stamp()
    srd(SC, 6, 1 << 28); srd(SD, 8, 1 << 28); srd(SW, 30, 1 << 30)
    a(f'v_lshlrev_b32 v11, 4, v0')
    for r in range(4):
        a(f'v_add_u32 v{vVo[r]}, {r*4096}, v11')
    for r in range(4):
        a(f'v_lshl_add_u32 v12, v{vG}, 2, {r}\nv_xor_b32 v12, v12, v{vI}\nv_lshlrev_b32 v12, 4, v12\nv_lshl_add_u32 v12, v{vG}, 8, v12\nv_add_u32 v{vKo[r]}, {r*4096}, v12')
    a(f's_lshr_b32 s56, s2, 4\ns_lshl_b32 s56, s56, 24\ns_and_b32 s57, s2, 15\ns_lshl_b32 s57, s57, 16\ns_add_u32 s56, s56, s57\ns_lshl_b32 s57, s3, 10\ns_add_u32 s56, s56, s57\ns_add_u32 s56, s56, {61440*256}')
    for T in range(4):
        a(f's_add_u32 s57, s2, {T}\ns_and_b32 s57, s57, 3\ns_lshl_b32 s57, s57, 14\ns_add_u32 s{52+T}, s56, s57')
    a('s_lshl_b32 s57, s3, 14\ns_mov_b32 m0, s57')
    kl = []
    def issue_k(n0, n1):
        for n in range(n0, n1):
            T, r = n >> 2, n & 3
            P.cap(cap)
            kl.append(P.vm(f'buffer_load_dwordx4 v{vKo[r]}, {S(SC)}, s{52+T} offen {ldflag} lds'))
            a('s_add_u32 m0, m0, 1024')
            a('s_nop 0')
    issue_k(0, 4)
    selectors(); consts()
    issue_k(4, l1_after_k)
    P.wait(l1[-1])
    P.stamp()
    for i in range(10):
        Ax = A0 if i % 2 == 0 else A1
        buildA(Ax, X + (i >> 1), i & 1)
        a('s_nop 1')
        a(f'v_mfma_f32_16x16x32_bf16 {vr(ACC)}, {vr(Ax)}, {vr(W+4*i)}, ' + ('0' if i == 0 else vr(ACC)))
    a('s_waitcnt lgkmcnt(0)')
    a(f's_add_u32 s{sT}, s{sT}, 0x01010101\nv_mov_b32 v{vT}, s{sT}')
    a('s_nop 6')
    tag4(ACC, vT)
    a('s_mov_b32 exec_hi, 0')
    P.vm(f'buffer_store_dwordx4 {vr(ACC)}, v{vVo[0]}, {S(SW)}, s68 offen sc1')
    a('s_mov_b32 exec_hi, -1')
    a('s_barrier')
    P.stamp()
    issue_k(l1_after_k, 16)
    a(f'v_mul_u32_u24 v{vW2o}, 1152, v{vG}\nv_lshlrev_b32 v{vWOo}, 2, v{vW2o}')
    a(f's_lshl_b32 s57, s3, 8\nv_lshl_add_u32 v11, v{vI}, 4, s57')
    a(f'v_add_u32 v{vW2o}, v{vW2o}, v11\nv_add_u32 v{vWOo}, v{vWOo}, v11')
    srd(SA, 12, 4096 * 1152); srd(SB, 20, 4608 * 1152)
    a(f'v_and_b32 v11, 3, v{vI}\nv_lshrrev_b32 v12, 2, v{vI}\nv_lshl_add_u32 v11, v11, 2, v12\nv_lshlrev_b32 v11, 8, v11')
    a('s_lshl_b32 s57, s3, 14\nv_add_u32 v11, s57, v11')
    for kk in range(4):
        a(f'v_add_u32 v12, {kk*4}, v{vG}\nv_xor_b32 v12, v12, v{vI}\nv_lshl_add_u32 v{vKr[kk]}, v12, 4, v11')
    vl = []
    def issue_v(n0, n1, c=cap):
        for n in range(n0, n1):
            T, r = n >> 2, n & 3
            P.cap(c)
            vl.append(P.vm(f'buffer_load_dwordx4 {vr(V+4*n)}, v{vVo[r]}, {S(SD)}, s{52+T} offen {ldflag}'))
    wol = []; w2l = []
    def issue_wo(c):
        a(f's_mul_i32 s57, s2, {16*1152}')
        for rg in range(4):
            P.cap(c)
            wol.append(P.vm(f'buffer_load_dwordx4 {vr(W+4*rg)}, v{vWOo}, {S(SA)}, s57 offen offset:{rg*1152} {ldflag}'))
    def issue_w2(c):
        a(f's_and_b32 s58, s2, 1\ns_lshl_b32 s57, s58, 1\ns_mul_i32 s56, s2, 18\ns_add_u32 s57, s57, s56\ns_mul_i32 s57, s57, 1152')
        for rg in range(5):
            if rg == 4:
                a('s_cmp_eq_u32 s58, 1\ns_cselect_b32 s57, 0x40000000, s57')
            P.cap(c)
            w2l.append(P.vm(f'buffer_load_dwordx4 {vr(W+16+4*rg)}, v{vW2o}, {S(SB)}, s57 offen {ldflag}'))
            if rg < 4: a(f's_add_u32 s57, s57, {4*1152}')
    issue_v(0, s_after_v)
    if wo_before_s: issue_wo(0)
    P.stamp()
    P.wait(kl[-1])
    a('s_barrier')
    P.stamp()
    a(f'v_lshrrev_b32 v11, 3, v{vI}\nv_lshlrev_b32 v11, 8, v11\nv_lshl_add_u32 v11, v{vG}, 4, v11')
    a(f'v_add_u32 v11, {L_Q}, v11')
    for kk in range(4):
        a(f'ds_read_b128 {vr(QB+4*kk)}, v11 offset:{kk*64}')
    def kread(T):
        for kk in range(4):
            a(f'ds_read_b128 {vr(KF+(T&1)*16+4*kk)}, v{vKr[kk]} offset:{T*4096}')
    kread(0); kread(1)
    for T in range(4):
        a(f's_waitcnt lgkmcnt({4 if T < 3 else 0})')
        for kk in range(4):
            a(f'v_mfma_f32_16x16x32_bf16 {vr(SS+4*T)}, {vr(KF+(T&1)*16+4*kk)}, {vr(QB+4*kk)}, ' + ('0' if kk == 0 else vr(SS+4*T)))
        if T + 2 < 4: kread(T + 2)
    a('s_nop 7')
    vM, vL, vt = TMP, TMP + 1, TMP + 2
    a(f'v_max3_f32 v{vM}, v{SS}, v{SS+1}, v{SS+2}')
    for k in range(3, 15, 2):
        a(f'v_max3_f32 v{vM}, v{vM}, v{SS+k}, v{SS+k+1}')
    a(f'v_max_f32 v{vM}, v{vM}, v{SS+15}')
    xrow('v_max_f32', vM, vt)
    a(f's_mov_b32 s57, {CSC:#x}\nv_mul_f32 v{vt}, s57, v{vM}')
    for k in range(16):
        a(f'v_fma_f32 v{SS+k}, v{SS+k}, s57, -v{vt}')
    for k in range(16):
        a(f'v_exp_f32 v{SS+k}, v{SS+k}')
    a('s_nop 0')
    a(f'v_add_f32 v{vL}, v{SS}, v{SS+1}')
    for k in range(2, 16):
        a(f'v_add_f32 v{vL}, v{vL}, v{SS+k}')
    for k in range(8):
        a(f'v_cvt_pk_bf16_f32 v{QB+k}, v{SS+2*k}, v{SS+2*k+1}')
    PK = QB
    xrow('v_add_f32', vL, vt)
    a(f's_lshl_b32 s57, s3, 4\ns_add_u32 s57, s57, {L_ST}\nv_add_u32 v11, s57, v0')
    a('s_mov_b64 exec, 0x101')
    a(f'ds_write_b64 v11, v[{vM}:{vL}]')
    a('s_mov_b64 exec, -1')
    P.stamp()
    issue_v(s_after_v, 16, 0)
    if not wo_before_s: issue_wo(0)
    issue_w2(0)
    HC = TMP + 4
    a(f'v_lshlrev_b32 v11, 4, v{vG}\nv_add_u32 v11, {L_H}, v11\nds_read_b128 {vr(HC)}, v11')
    a(f'v_mov_b32 v12, {L_G}\nds_read_b64 v[{X}:{X+1}], v12')
    for n in range(16):
        Ax = A0 if n % 2 == 0 else A1
        buildA(Ax, PK + (n >> 1), n & 1)
        P.wait(vl[n])
        a('s_nop 0')
        a(f'v_mfma_f32_16x16x32_bf16 {vr(ACC)}, {vr(Ax)}, {vr(V+4*n)}, ' + ('0' if n == 0 else vr(ACC)))
    a(f'v_lshrrev_b32 v11, 1, v{vG}\nv_lshlrev_b32 v11, 9, v11\nv_lshl_add_u32 v11, v{vI}, 5, v11\nv_and_b32 v12, 1, v{vG}\nv_lshl_add_u32 v11, v12, 4, v11')
    a(f's_lshl_b32 s57, s3, 10\ns_add_u32 s57, s57, {L_OP}\nv_add_u32 v11, s57, v11')
    a('s_nop 1')
    a(f'ds_write_b128 v11, {vr(ACC)}')
    a('s_waitcnt lgkmcnt(0)')
    a('s_barrier')
    P.stamp()
    for rg in range(5):
        Ax = A0 if rg % 2 == 0 else A1
        buildA(Ax, HC + (rg >> 1), rg & 1)
        P.wait(w2l[rg])
        a('s_nop 0')
        a(f'v_mfma_f32_16x16x32_bf16 {vr(DB)}, {vr(Ax)}, {vr(W+16+4*rg)}, ' + ('0' if rg == 0 else vr(DB)))
    a(f'v_lshrrev_b32 v13, 2, v0\nv_lshlrev_b32 v13, 14, v13\nv_and_b32 v12, 3, v0\nv_lshl_add_u32 v13, v12, 4, v13')
    a(f's_lshl_b32 s56, s3, 17\ns_lshl_b32 s57, s2, 6\ns_add_u32 s56, s56, s57\ns_add_u32 s56, s56, {WS_HC}')
    a(f'v_lshlrev_b32 v11, 3, v{vG}\nv_add_u32 v11, {L_OC}, v11')
    a('s_nop 4')
    for k in range(4):
        a(f'v_mul_f32 v{DB+k}, v{X+1}, v{DB+k}')
    P.stamp()
    a('s_barrier')
    P.stamp()
    a(f'ds_read_b64 v[{HC}:{HC+1}], v11\ns_waitcnt lgkmcnt(0)')
    for rg in range(4):
        Ax = A0 if rg % 2 == 0 else A1
        buildA(Ax, HC + (rg >> 1), rg & 1)
        a('s_nop 1')
        a(f'v_mfma_f32_16x16x32_bf16 {vr(DA)}, {vr(Ax)}, {vr(W+4*rg)}, ' + ('0' if rg == 0 else vr(DA)))
    a('s_nop 7')
    for k in range(4):
        a(f'v_fma_f32 v{DA+k}, v{DA+k}, v{X}, v{DB+k}')
    tag4(DA, vT)
    a('s_mov_b32 exec_hi, 0')
    P.vm(f'buffer_store_dwordx4 {vr(DA)}, v13, {S(SW)}, s56 offen sc1')
    a('s_mov_b32 exec_hi, -1')
    P.stamp()
    a('s_cmp_ge_u32 s2, 36\ns_cbranch_scc1 L_stream_done')
    a(f's_lshl_b32 s56, s2, 14\ns_lshl_b32 s57, s3, 12\ns_add_u32 s56, s56, s57\ns_add_u32 s56, s56, {WS_HC}')
    a(f's_mov_b32 s{sTO}, 0x200000')
    a('L_pollC:')
    for i in range(4):
        a(f'buffer_load_dwordx4 {vr(V+4*i)}, v{vVo[0]}, {S(SW)}, s56 offen offset:{i*1024} sc1')
    a('s_mov_b64 s[70:71], -1')
    for i in range(4):
        a(f's_waitcnt vmcnt({3-i})')
        gtag(11, V + 4 * i)
        a(f'v_cmp_eq_u32 vcc, v11, v{vT}\ns_nop 1\ns_and_b64 s[70:71], s[70:71], vcc')
    a(f's_sub_u32 s{sTO}, s{sTO}, 1\ns_cbranch_scc1 L_pollC_done')
    a('s_cmp_eq_u64 s[70:71], -1\ns_cbranch_scc0 L_pollC')
    a('L_pollC_done:')
    for k in range(4):
        a(f'v_add_f32 v{V+k}, v{V+k}, v{V+4+k}\nv_add_f32 v{V+8+k}, v{V+8+k}, v{V+12+k}')
    for k in range(4):
        a(f'v_add_f32 v{V+k}, v{V+k}, v{V+8+k}')
    rowred('v_add_f32', [V, V + 1, V + 2, V + 3], (8, 4))
    a(f'v_lshlrev_b32 v11, 6, v{vG}\nv_lshl_add_u32 v11, v{vI}, 4, v11\ns_lshl_b32 s57, s3, 8\ns_add_u32 s57, s57, {L_FC}\nv_add_u32 v11, s57, v11')
    a('s_mov_b32 exec_lo, 0x000f000f\ns_mov_b32 exec_hi, 0x000f000f')
    a(f'ds_write_b128 v11, {vr(V)}')
    a('s_waitcnt lgkmcnt(0)')
    a('s_barrier')
    a('L_stream_done:')
    P.stamp()
    dump_stamps(P, 0)
    a('s_endpgm')

    a('L_service:')
    P = Path(a, stamps)
    a('s_setprio 3')
    XG = 32
    WO4 = 48
    W24 = 64
    QP = 84
    HP = 144
    B1 = 152; B2 = 153
    A0, A1 = 156, 160
    DA, DB = 164, 168
    vT = 31
    vL16 = 15; vHo = 16; vHo2 = 17; vQo = 18
    a(f'v_lshlrev_b32 v{vL16}, 4, v0')
    a('s_waitcnt lgkmcnt(0)')
    a('s_load_dword s60, s[30:31], 0')
    srd(SA, 4, 1152); srd(SB, 24, 1152)
    xl = [P.vm(f'buffer_load_dwordx4 {vr(XG)}, v{vL16}, {S(SA)}, 0 offen'),
          P.vm(f'buffer_load_dwordx4 {vr(XG+4)}, v{vL16}, {S(SA)}, 0 offen offset:1024'),
          P.vm(f'buffer_load_dwordx4 {vr(XG+8)}, v{vL16}, {S(SB)}, 0 offen'),
          P.vm(f'buffer_load_dwordx4 {vr(XG+12)}, v{vL16}, {S(SB)}, 0 offen offset:1024')]
    srd(SW, 30, 1 << 30)
    a('s_and_b32 s53, s2, 1\ns_lshl_b32 s52, s53, 1\ns_mul_i32 s54, s2, 18\ns_add_u32 s52, s52, s54')
    a(f'v_and_b32 v11, 4, v0\nv_cmp_eq_u32 vcc, 0, v11\nv_mov_b32 v12, 4\ns_nop 0\nv_cndmask_b32 v19, v12, v{vG}, vcc')
    a('v_and_b32 v20, 3, v0')
    a('v_lshl_add_u32 v11, v19, 2, v20\nv_add_u32 v11, s52, v11\nv_lshlrev_b32 v11, 1, v11')
    srd(SC, 18, 4608 * 2)
    b1l = P.vm(f'buffer_load_ushort v{B1}, v11, {S(SC)}, 0 offen')
    a('s_lshr_b32 s54, s2, 3\ns_and_b32 s55, s2, 7\ns_cmp_eq_u32 s54, 4\ns_cselect_b32 s56, 1, 2\ns_cselect_b32 s57, 1, 3')
    a('s_lshr_b32 s56, s55, s56\ns_and_b32 s57, s55, s57')
    a('s_lshl_b32 s54, s54, 7\ns_lshl_b32 s56, s56, 2\ns_lshl_b32 s57, s57, 5\ns_add_u32 s54, s54, s56\ns_add_u32 s54, s54, s57')
    a(f'v_lshrrev_b32 v11, 2, v{vI}\nv_lshl_add_u32 v11, v11, 3, v20\nv_add_u32 v11, s54, v11\nv_lshlrev_b32 v21, 1, v11')
    srd(SD, 22, 1152)
    b2l = P.vm(f'buffer_load_ushort v{B2}, v21, {S(SD)}, 0 offen')
    a(f'v_mul_u32_u24 v11, 1152, v{vG}\nv_lshl_add_u32 v12, v{vI}, 4, v11\nv_lshlrev_b32 v11, 2, v11\nv_lshl_add_u32 v13, v{vI}, 4, v11')
    a(f'v_cmp_gt_u32 vcc, 8, v{vI}\nv_mov_b32 v14, 0x40000000\nv_add_u32 v12, 1024, v12\nv_add_u32 v13, 1024, v13')
    a('v_cndmask_b32 v12, v14, v12, vcc\nv_cndmask_b32 v13, v14, v13, vcc')
    srd(SA, 12, 4096 * 1152); srd(SB, 20, 4608 * 1152)
    a(f's_mul_i32 s57, s2, {16*1152}')
    wol = [P.vm(f'buffer_load_dwordx4 {vr(WO4+4*rg)}, v13, {S(SA)}, s57 offen offset:{rg*1152} {ldflag}') for rg in range(4)]
    a('s_mul_i32 s57, s52, 1152')
    w2l = []
    for rg in range(5):
        if rg == 4: a('s_cmp_eq_u32 s53, 1\ns_cselect_b32 s57, 0x40000000, s57')
        w2l.append(P.vm(f'buffer_load_dwordx4 {vr(W24+4*rg)}, v12, {S(SB)}, s57 offen {ldflag}'))
        if rg < 4: a(f's_add_u32 s57, s57, {4*1152}')
    selectors(); consts()
    P.wait(xl[3])
    a('v_mov_b32 v22, 0')
    for k in range(8):
        a(f'v_lshlrev_b32 v11, 16, v{XG+k}\nv_lshlrev_b32 v12, 16, v{XG+8+k}\nv_and_b32 v13, 0xffff0000, v{XG+k}\nv_and_b32 v14, 0xffff0000, v{XG+8+k}')
        a('v_mul_f32 v11, v11, v12\nv_mul_f32 v13, v13, v14\nv_cvt_pk_bf16_f32 v11, v11, v13')
        a('v_lshlrev_b32 v12, 16, v11\nv_and_b32 v13, 0xffff0000, v11\nv_add_f32 v22, v22, v12\nv_add_f32 v22, v22, v13')
    rowred('v_add_f32', [22])
    xrow('v_add_f32', 22, 11)
    a('v_cvt_pk_bf16_f32 v22, v22, v22\nv_and_b32 v22, 0xffff0000, v22')
    a(f'v_mul_f32 v22, {f2u(-LOG2E):#x}, v22\nv_exp_f32 v22, v22\ns_nop 0\nv_add_f32 v22, 1.0, v22\nv_rcp_f32 v22, v22\ns_nop 0')
    a('v_cvt_pk_bf16_f32 v22, v22, v22\nv_and_b32 v22, 0xffff0000, v22')
    a('v_sub_f32 v23, 1.0, v22\nv_cvt_pk_bf16_f32 v23, v23, v23\nv_and_b32 v23, 0xffff0000, v23')
    a(f'v_mov_b32 v11, {L_G}\nds_write_b64 v11, v[22:23]')
    a('s_lshr_b32 s54, s2, 6\ns_mul_i32 s54, s54, 18\ns_bfe_u32 s55, s2, 0x20004\ns_lshl_b32 s55, s55, 1\ns_add_u32 s55, s55, s54\ns_lshl_b32 s55, s55, 13')
    a(f's_add_u32 s68, s55, {WS_HA}\ns_add_u32 s69, s68, 4096')
    a(f'v_lshrrev_b32 v11, 5, v0\nv_lshlrev_b32 v11, 13, v11\nv_and_b32 v12, 31, v0\nv_lshl_add_u32 v{vQo}, v12, 4, v11')
    a('s_lshr_b32 s55, s2, 6\ns_mul_i32 s55, s55, 1152\ns_sub_u32 s55, s52, s55\ns_lshr_b32 s55, s55, 2')
    a(f's_add_u32 s54, s54, 8\ns_lshl_b32 s54, s54, 13\ns_add_u32 s72, s54, {WS_HA}')
    for (dst, rgsrc) in ((vHo, f'v{vG}'), (vHo2, '4')):
        a(f'v_mov_b32 v11, {rgsrc}\nv_add_u32 v11, s55, v11')
        a(f'v_lshrrev_b32 v12, 5, v11\nv_lshlrev_b32 v12, 13, v12\nv_lshl_add_u32 v12, v{vI}, 9, v12')
        a(f'v_and_b32 v13, 1, v11\nv_lshl_add_u32 v12, v13, 8, v12\nv_bfe_u32 v13, v11, 1, 4\nv_lshl_add_u32 v{dst}, v13, 4, v12')
    for k in range(8): a(f'v_mov_b32 v{HP+k}, 0')
    a('s_cmp_eq_u32 s53, 0\ns_cselect_b32 s73, 0x7fff, 0')
    a('s_waitcnt lgkmcnt(0)')
    a(f's_add_u32 s{sT}, s{sT}, 0x01010101\nv_mov_b32 v{vT}, s{sT}')
    P.stamp()
    a('s_barrier')
    P.stamp()
    def qload(p):
        so, im = ('s68', p * 512) if p < 8 else ('s69', (p - 8) * 512)
        a(f'buffer_load_dwordx4 {vr(QP+4*p)}, v{vQo}, {S(SW)}, {so} offen offset:{im} sc1')
    for p in range(15): qload(p)
    a('s_mov_b32 s56, 0x7fff7fff\ns_mov_b32 s57, 0x7fff7fff\ns_mov_b32 s54, s73\ns_mov_b32 s55, 0')
    a('s_mov_b64 exec, s[56:57]')
    a(f'buffer_load_dwordx4 {vr(HP)}, v{vHo}, {S(SW)}, s72 offen sc1')
    a('s_mov_b64 exec, s[54:55]\ns_cbranch_execz L_pa_first')
    a(f'buffer_load_dwordx4 {vr(HP+4)}, v{vHo2}, {S(SW)}, s72 offen sc1')
    a('L_pa_first:\ns_mov_b64 exec, -1')
    a(f's_mov_b32 s{sTO}, 0x200000')
    a('L_pollA:')
    a('s_waitcnt vmcnt(0)')
    a('s_mov_b64 s[70:71], 0')
    for p in range(17):
        b = QP + 4 * p if p < 15 else HP + 4 * (p - 15)
        gtag(11, b)
        a(f'v_cmp_ne_u32 vcc, v11, v{vT}\ns_nop 1')
        if p == 15: a('s_and_b64 exec, vcc, s[56:57]')
        elif p == 16: a('s_and_b64 exec, vcc, s[54:55]')
        else: a('s_mov_b64 exec, vcc')
        a(f's_cbranch_execz L_pa{p}')
        a('s_or_b64 s[70:71], s[70:71], exec')
        if p < 15: qload(p)
        else: a(f'buffer_load_dwordx4 {vr(b)}, v{vHo if p == 15 else vHo2}, {S(SW)}, s72 offen sc1')
        a(f'L_pa{p}:\ns_mov_b64 exec, -1')
    a(f's_sub_u32 s{sTO}, s{sTO}, 1\ns_cbranch_scc1 L_pollA_done')
    a('s_cmp_lg_u64 s[70:71], 0\ns_cbranch_scc1 L_pollA')
    a('L_pollA_done:')
    a('s_waitcnt vmcnt(0)')
    P.stamp()
    for p in range(1, 15):
        for k in range(4):
            a(f'v_add_f32 v{QP+k}, v{QP+k}, v{QP+4*p+k}')
    a(f'v_cvt_pk_bf16_f32 v{QP}, v{QP}, v{QP+1}\nv_cvt_pk_bf16_f32 v{QP+1}, v{QP+2}, v{QP+3}')
    a(f'v_lshrrev_b32 v11, 5, v0\nv_lshlrev_b32 v11, 8, v11\nv_lshl_add_u32 v11, v{vI}, 4, v11\nv_and_b32 v12, 1, v{vG}\nv_lshl_add_u32 v11, v12, 3, v11')
    a(f'v_add_u32 v11, {L_Q}, v11\nds_write_b64 v11, v[{QP}:{QP+1}]')
    rowred('v_add_f32', [HP + k for k in range(8)])
    a('v_and_b32 v11, 7, v0')
    a(f'v_mov_b32 v12, v{HP}')
    for k in range(1, 8):
        a(f'v_cmp_eq_u32 vcc, {k}, v11\ns_nop 1\nv_cndmask_b32 v12, v12, v{HP+k}, vcc')
    a(f'v_cvt_pk_bf16_f32 v12, v12, v12\nv_and_b32 v12, 0xffff0000, v12\nv_lshlrev_b32 v13, 16, v{B1}\nv_add_f32 v12, v12, v13')
    a('v_cvt_pk_bf16_f32 v12, v12, v12\nv_and_b32 v12, 0xffff0000, v12')
    k1 = -2.0 * (2.0 / 3.141592653589793) ** 0.5 * LOG2E
    a(f'v_mul_f32 v13, v12, v12\nv_mov_b32 v14, {f2u(k1):#x}\ns_mov_b32 s57, {f2u(k1*0.044715):#x}\nv_fma_f32 v13, v13, s57, v14\nv_mul_f32 v13, v13, v12')
    a('v_exp_f32 v13, v13\ns_nop 0\nv_add_f32 v13, 1.0, v13\nv_rcp_f32 v13, v13\ns_nop 0\nv_mul_f32 v12, v12, v13')
    a('v_cvt_pk_bf16_f32 v12, v12, v12')
    a('v_cmp_eq_u32 vcc, 4, v19\ns_nop 3\ns_cmp_eq_u32 s53, 1\ns_cselect_b64 s[70:71], vcc, 0\nv_cndmask_b32 v12, v12, 0, s[70:71]')
    a(f'v_lshlrev_b32 v11, 4, v20\nv_lshl_add_u32 v11, v19, 1, v11\nv_add_u32 v11, {L_H}, v11')
    a('s_mov_b32 exec_lo, 0x000f00ff\ns_mov_b32 exec_hi, 0x000f000f')
    a('ds_write_b16 v11, v12')
    a('s_mov_b64 exec, -1')
    a('s_waitcnt lgkmcnt(0)')
    a('s_barrier')
    P.stamp()
    HC = 24
    a(f'v_lshlrev_b32 v11, 4, v{vG}\nv_add_u32 v11, {L_H}, v11\nds_read_b128 {vr(HC)}, v11\ns_waitcnt lgkmcnt(0)')
    for rg in range(5):
        Ax = A0 if rg % 2 == 0 else A1
        buildA(Ax, HC + (rg >> 1), rg & 1)
        a('s_nop 1')
        a(f'v_mfma_f32_16x16x32_bf16 {vr(DB)}, {vr(Ax)}, {vr(W24+4*rg)}, ' + ('0' if rg == 0 else vr(DB)))
    vPo, vCo, vCs = 16, 17, 18
    a(f'v_lshrrev_b32 v11, 2, v0\nv_lshlrev_b32 v11, 10, v11\nv_lshl_add_u32 v{vPo}, v20, 4, v11')
    a(f's_lshr_b32 s54, s2, 4\ns_and_b32 s55, s2, 15\ns_lshl_b32 s56, s54, 14\ns_lshl_b32 s57, s55, 6\ns_add_u32 s68, s56, s57\ns_add_u32 s68, s68, {WS_HBO}')
    a(f's_lshl_b32 s69, s2, 4\ns_add_u32 s69, s69, {WS_HBS}')
    a(f's_lshl_b32 s72, s2, 10\ns_add_u32 s72, s72, {WS_HBO}')
    a(f's_lshl_b32 s73, s54, 8\ns_add_u32 s73, s73, {WS_HBS}')
    a(f'v_lshlrev_b32 v11, 6, v{vI}\nv_lshl_add_u32 v{vCo}, v{vG}, 4, v11\nv_lshlrev_b32 v{vCs}, 4, v{vI}')
    vHCo = 28
    a(f'v_lshrrev_b32 v11, 2, v{vI}\nv_lshl_add_u32 v11, v{vG}, 1, v11\nv_lshlrev_b32 v11, 14, v11\nv_lshl_add_u32 v{vHCo}, v20, 4, v11')
    a(f'v_lshrrev_b32 v29, 5, v0\nv_lshlrev_b32 v29, 3, v29\nv_add_u32 v29, {L_ST}, v29')
    a(f'v_add_u32 v30, {L_OP}, v{vL16}')
    for k in range(4):
        a(f'v_mul_f32 v{DB+k}, v23, v{DB+k}')
    a('s_barrier')
    P.stamp()
    OPR = QP
    STR = QP + 16
    for w in range(4):
        a(f'ds_read_b64 v[{STR+2*w}:{STR+2*w+1}], v29 offset:{w*16}')
    for w in range(4):
        a(f'ds_read_b128 {vr(OPR+4*w)}, v30 offset:{w*1024}')
    a('s_waitcnt lgkmcnt(4)')
    a(f'v_max3_f32 v11, v{STR}, v{STR+2}, v{STR+4}\nv_max_f32 v11, v11, v{STR+6}')
    a(f'v_perm_b32 v12, v11, v{vT}, s{sSEL[0]}\nv_perm_b32 v13, v11, v{vT}, s{sSEL[2]}')
    a('v_cmp_gt_u32 vcc, 32, v0\ns_nop 1\nv_cndmask_b32 v11, v13, v12, vcc')
    a(f's_mov_b32 s57, {CSC:#x}')
    for w in range(4):
        a(f'v_sub_f32 v{STR+2*w}, v{STR+2*w}, v11\nv_mul_f32 v{STR+2*w}, s57, v{STR+2*w}')
    for w in range(4):
        a(f'v_exp_f32 v{STR+2*w}, v{STR+2*w}')
    a('s_waitcnt lgkmcnt(0)')
    for k in range(4):
        a(f'v_mul_f32 v{OPR+k}, v{OPR+k}, v{STR}')
    a(f'v_mul_f32 v12, v{STR+1}, v{STR}')
    for w in range(1, 4):
        for k in range(4):
            a(f'v_fmac_f32 v{OPR+k}, v{OPR+4*w+k}, v{STR+2*w}')
        a(f'v_fmac_f32 v12, v{STR+2*w+1}, v{STR+2*w}')
    tag4(OPR, vT)
    P.vm(f'buffer_store_dwordx4 {vr(OPR)}, v{vPo}, {S(SW)}, s68 offen sc1')
    SG = QP + 24
    a(f'v_mov_b32 v{SG}, v11\nv_mov_b32 v{SG+1}, v12\nv_mov_b32 v{SG+2}, v11\nv_mov_b32 v{SG+3}, v12\ns_nop 1')
    a(f'v_permlane32_swap_b32 v{SG}, v{SG+2}\nv_permlane32_swap_b32 v{SG+1}, v{SG+3}\ns_nop 1')
    a(f'v_perm_b32 v{SG+1}, v{SG+1}, v{vT}, s{sSEL[1]}\nv_perm_b32 v{SG+3}, v{SG+3}, v{vT}, s{sSEL[3]}')
    a('v_mov_b32 v13, 0\ns_mov_b64 exec, 1')
    P.vm(f'buffer_store_dwordx4 {vr(SG)}, v13, {S(SW)}, s69 offen sc1')
    a('s_mov_b64 exec, -1')
    P.stamp()
    CO = QP + 32; CS = QP + 36
    a(f's_mov_b32 s{sTO}, 0x200000')
    a('L_pollB:')
    a(f'buffer_load_dwordx4 {vr(CO)}, v{vCo}, {S(SW)}, s72 offen sc1')
    a(f'buffer_load_dwordx4 {vr(CS)}, v{vCs}, {S(SW)}, s73 offen sc1')
    a('s_waitcnt vmcnt(1)')
    gtag(11, CO)
    a(f'v_cmp_eq_u32 s[70:71], v11, v{vT}')
    a('s_waitcnt vmcnt(0)')
    gtag(12, CS)
    a(f'v_cmp_eq_u32 vcc, v12, v{vT}\ns_nop 1\ns_and_b64 s[70:71], s[70:71], vcc')
    a(f's_sub_u32 s{sTO}, s{sTO}, 1\ns_cbranch_scc1 L_pollB_done')
    a('s_cmp_eq_u64 s[70:71], -1\ns_cbranch_scc0 L_pollB')
    a('L_pollB_done:')
    P.stamp()
    a('s_bitcmp1_b32 s2, 3\ns_cselect_b64 vcc, -1, 0')
    a(f'v_cndmask_b32 v11, v{CS}, v{CS+2}, vcc\nv_cndmask_b32 v12, v{CS+1}, v{CS+3}, vcc')
    a('v_mov_b32 v13, v11')
    rowred('v_max_f32', [13])
    a(f'v_sub_f32 v11, v11, v13\nv_mul_f32 v11, s57, v11\nv_exp_f32 v11, v11\ns_nop 0')
    a('v_mul_f32 v12, v12, v11')
    for k in range(4):
        a(f'v_mul_f32 v{CO+k}, v{CO+k}, v11')
    rowred('v_add_f32', [12, CO, CO + 1, CO + 2, CO + 3])
    a('v_rcp_f32 v12, v12\ns_nop 0')
    for k in range(4):
        a(f'v_mul_f32 v{CO+k}, v{CO+k}, v12')
    a(f'v_cvt_pk_bf16_f32 v{HC}, v{CO}, v{CO+1}\nv_cvt_pk_bf16_f32 v{HC+1}, v{CO+2}, v{CO+3}')
    a(f'v_lshlrev_b32 v11, 3, v{vG}\nv_add_u32 v11, {L_OC}, v11')
    a('s_mov_b32 exec_lo, 0x00010001\ns_mov_b32 exec_hi, 0x00010001')
    a(f'ds_write_b64 v11, v[{HC}:{HC+1}]')
    a('s_mov_b64 exec, -1')
    a('s_waitcnt lgkmcnt(0)')
    a('s_barrier')
    P.stamp()
    for rg in range(4):
        Ax = A0 if rg % 2 == 0 else A1
        buildA(Ax, HC + (rg >> 1), rg & 1)
        a('s_nop 1')
        a(f'v_mfma_f32_16x16x32_bf16 {vr(DA)}, {vr(Ax)}, {vr(WO4+4*rg)}, ' + ('0' if rg == 0 else vr(DA)))
    a(f's_lshl_b32 s56, s2, 6\ns_add_u32 s56, s56, {WS_HC + 32*16384}')
    a('s_nop 6')
    for k in range(4):
        a(f'v_fma_f32 v{DA+k}, v{DA+k}, v22, v{DB+k}')
    tag4(DA, vT)
    a('s_mov_b32 exec_lo, 0x00ff00ff\ns_mov_b32 exec_hi, 0')
    P.vm(f'buffer_store_dwordx4 {vr(DA)}, v{vHCo}, {S(SW)}, s56 offen sc1')
    a('s_mov_b64 exec, -1')
    P.stamp()
    a('s_cmp_ge_u32 s2, 36\ns_cbranch_scc1 L_service_done')
    srd(SD, 26, 1152)
    a(f'v_lshlrev_b32 v11, 8, v{vG}\nv_lshl_add_u32 v11, v{vI}, 2, v11\nv_add_u32 v11, {L_FC}, v11')
    a(f'v_lshlrev_b32 v{B2}, 16, v{B2}')
    a('s_barrier')
    a('ds_read2_b32 v[32:33], v11 offset0:0 offset1:16\nds_read2_b32 v[34:35], v11 offset0:32 offset1:48\ns_waitcnt lgkmcnt(0)')
    a('v_add_f32 v32, v32, v33\nv_add_f32 v34, v34, v35\nv_add_f32 v32, v32, v34')
    xrow('v_add_f32', 32, 33)
    a(f'v_fma_f32 v32, v{B2}, v23, v32\nv_cvt_pk_bf16_f32 v32, v32, v32')
    a('s_mov_b64 exec, 0xffff')
    a(f'buffer_store_short v32, v21, {S(SD)}, 0 offen')
    a('s_cmp_lg_u32 s2, 0\ns_cbranch_scc1 L_service_done')
    a(f's_mov_b64 exec, 1\nv_mov_b32 v13, 0\nbuffer_store_dword v{vT}, v13, {S(SW)}, 0 offen sc1')
    a('L_service_done:')
    P.stamp()
    dump_stamps(P, 4)
    a('L_end:\ns_endpgm')
    hdr = open('gated_mix__sliding_block_cached__dense_activation_gelu__decode.s.ref').read().split('; Override launch')[0]
    txt = hdr + HDR.format(gx=256, bx=320, lds=LDS_BYTES, name=NAME) + a.text() + FTR.format(name=NAME, vgpr=NV, sgpr=102, accum=NV)
    open(path, 'w').write(txt)
    build(path, NAME)
    print('built', path)

if __name__ == '__main__':
    for j in range(256): assert (j * 4370) >> 16 == j // 15
    gen('k1.s', stamps=False)
    gen('k1s.s', stamps=True)
```

```python
import sys, os
sys.path.insert(0, 'bench')
from common import *
NAME = 'gated_mix__sliding_block_cached__dense_activation_gelu__decode_kernel'

WS_E   = 0
WS_HA  = 0x1000
WS_HBO = 0xA0000
WS_HBS = 0xE0000
WS_HC  = 0xF0000
WS_STAMP = 0x20000000
L_K  = 0
L_Q  = 65536
L_H  = L_Q + 512
L_G  = L_H + 64
L_OC = L_G + 64
L_ST = L_OC + 64
L_OP = L_ST + 64 + 192
L_FC = L_OP + 4096
LDS_BYTES = L_FC + 1024
assert L_OP % 16 == 0

LOG2E = 1.4426950408889634
import struct
def f2u(x): return struct.unpack('<I', struct.pack('<f', x))[0]
CSC = f2u(LOG2E / (128 ** 0.5))

class Path:
    def __init__(self, a, stamps):
        self.a = a; self.n = 0; self.st = 0; self.stamps = stamps
    def vm(self, text):
        self.a(text); self.n += 1; return self.n - 1
    def wait(self, idx):
        k = self.n - 1 - idx
        assert 0 <= k <= 63, k
        self.a(f's_waitcnt vmcnt({k})')
    def cap(self, c):
        if c and self.n >= c:
            self.a(f's_waitcnt vmcnt({c-1})')
    def stamp(self):
        if self.stamps:
            assert self.st < 12
            self.a(f's_memrealtime s[{76+2*self.st}:{77+2*self.st}]'); self.st += 1

def vr(b, n=4): return f'v[{b}:{b+n-1}]'

def gen(path, stamps=False, cap=8, l1_after_k=8, s_after_v=16, wo_before_s=True, ldflag='nt', probe=None):
    a = Asm()
    SA, SB, SC, SD, SW = 32, 36, 40, 44, 48
    def srd(slot, ptr, size):
        a(f's_mov_b64 s[{slot}:{slot+1}], s[{ptr}:{ptr+1}]\ns_mov_b32 s{slot+2}, {size}\ns_mov_b32 s{slot+3}, 0x20000')
    def S(slot): return f's[{slot}:{slot+3}]'
    sT = 60
    sSEL = [61, 62, 63, 64]
    sG01, sG2, sG3 = 65, 66, 67
    sTO = 59
    a('s_cmp_ge_u32 s2, 256\ns_cbranch_scc1 L_end')
    if stamps: a('s_memrealtime s[74:75]')
    a('s_load_dwordx16 s[4:19], s[0:1], 0\ns_load_dwordx8 s[20:27], s[0:1], 64\ns_load_dwordx4 s[28:31], s[0:1], 96')
    a('v_lshrrev_b32 v1, 6, v0\nv_and_b32 v0, 63, v0')
    a('v_readfirstlane_b32 s3, v1')
    vG, vI = 9, 10
    a(f'v_lshrrev_b32 v{vG}, 4, v0\nv_and_b32 v{vI}, 15, v0')
    a('s_cmp_eq_u32 s3, 4\ns_cbranch_scc1 L_service')

    def selectors():
        a(f'v_and_b32 v11, 1, v{vI}\nv_cmp_eq_u32 vcc, 1, v11')
        a('v_mov_b32 v12, 0x0c0c0100\nv_mov_b32 v13, 0x01000c0c')
        a('v_cndmask_b32 v12, v12, v13, vcc')
        a('v_mov_b32 v14, 0x0c0c0302\nv_mov_b32 v13, 0x03020c0c')
        a('v_cndmask_b32 v13, v14, v13, vcc')
        a(f'v_bfe_u32 v11, v{vI}, 1, 2')
        a('v_mov_b32 v14, 0x0c0c0c0c')
        for r in range(4):
            a(f'v_cmp_eq_u32 vcc, {r}, v11\ns_nop 1')
            a(f'v_cndmask_b32 v{1+r}, v14, v12, vcc\nv_cndmask_b32 v{5+r}, v14, v13, vcc')
    def consts():
        for k in range(4):
            a(f's_mov_b32 s{sSEL[k]}, {0x07060500 + k:#x}')
        a(f's_mov_b32 s{sG01}, 0x0c0c0400\ns_mov_b32 s{sG2}, 0x0c040100\ns_mov_b32 s{sG3}, 0x04020100')
    def buildA(dst, src, hi):
        for r in range(4):
            a(f'v_perm_b32 v{dst+r}, v{src}, v{src}, v{(5 if hi else 1)+r}')
    def tag4(b, vT):
        for k in range(4):
            a(f'v_perm_b32 v{b+k}, v{b+k}, v{vT}, s{sSEL[k]}')
    def gtag(dst, b):
        a(f'v_perm_b32 v{dst}, v{b+1}, v{b}, s{sG01}\nv_perm_b32 v{dst}, v{b+2}, v{dst}, s{sG2}\nv_perm_b32 v{dst}, v{b+3}, v{dst}, s{sG3}')
    def xrow(op, v, t):
        a(f'v_mov_b32 v{t}, v{v}\ns_nop 1\nv_permlane16_swap_b32 v{v}, v{t}\ns_nop 1\n{op} v{v}, v{v}, v{t}')
        a(f'v_mov_b32 v{t}, v{v}\ns_nop 1\nv_permlane32_swap_b32 v{v}, v{t}\ns_nop 1\n{op} v{v}, v{v}, v{t}')
    def rowred(op, regs, rots=(8, 4, 2, 1)):
        for rot in rots:
            if len(regs) < 3: a('s_nop 1')
            for v in regs:
                a(f'{op}_dpp v{v}, v{v}, v{v} row_ror:{rot} row_mask:0xf bank_mask:0xf')
    def dump_stamps(P, widx):
        if not stamps: return
        while P.st < 12: P.stamp()
        a('s_waitcnt lgkmcnt(0)')
        if probe is not None:
            pw, pk, pm, pwg = probe
            if (pw == 4) == (widx == 4):
                a(f's_cmp_lg_u32 s2, {pwg}\ns_cbranch_scc1 L_noprobe{widx}\ns_cmp_lg_u32 s3, {pw}\ns_cbranch_scc1 L_noprobe{widx}')
                a(f's_sub_u32 s52, s{74+2*pk}, s74\ns_mul_i32 s52, s52, {pm}\ns_min_u32 s52, s52, 20000\ns_add_u32 s52, s52, s98')
                a(f'L_spin{widx}:\ns_memrealtime s[54:55]\ns_waitcnt lgkmcnt(0)\ns_sub_u32 s53, s54, s52\ns_cmp_lt_i32 s53, 0\ns_cbranch_scc1 L_spin{widx}')
                a(f'L_noprobe{widx}:')
            return
        a(f's_mul_i32 s52, s2, 5\ns_add_u32 s52, s52, s3\ns_mul_i32 s52, s52, 128\ns_add_u32 s52, s52, {WS_STAMP}')
        a('s_mov_b64 exec, 1\nv_mov_b32 v1, 0')
        for i in range(13):
            a(f'v_mov_b32 v4, s{74+2*i}\nv_mov_b32 v5, s{75+2*i}')
            a(f'buffer_store_dwordx2 v[4:5], v1, {S(SW)}, s52 offen offset:{i*8}\ns_nop 1')

    P = Path(a, stamps)
    vXO, vL1, vW2o, vWOo = 15, 16, 17, 18
    vKo = [19, 20, 21, 22]; vVo = [23, 24, 25, 26]; vKr = [27, 28, 29, 30]
    vT = 31
    X = 32
    A0, A1 = 40, 44
    ACC = 48
    DA, DB = 52, 56
    TMP = 60
    W = 68
    V = 108
    QB = 172
    SS = 188
    KF = 204
    NV = 236
    a('s_and_b32 s52, s2, 63\ns_lshl_b32 s52, s52, 2\ns_add_u32 s52, s52, s3')
    a('s_mul_i32 s53, s52, 4370\ns_lshr_b32 s53, s53, 16')
    a('s_mul_i32 s54, s53, 15\ns_sub_u32 s54, s52, s54')
    a('s_lshr_b32 s55, s2, 6')
    a('s_cmp_lt_u32 s53, 8\ns_cselect_b32 s56, 8, 9\ns_cselect_b32 s57, 0, 8')
    a('s_sub_u32 s57, s53, s57\ns_mul_i32 s58, s56, s55\ns_add_u32 s57, s57, s58\ns_lshl_b32 s57, s57, 8')
    a('s_lshl_b32 s56, s56, 10')
    a(f's_mul_i32 s{SA+2}, s56, 576\ns_cmp_eq_u32 s53, 17\ns_cselect_b32 s{SA+2}, 0, s{SA+2}\ns_mov_b32 s{SA+3}, 0x20000')
    a(f's_mov_b32 s{SB+2}, 1152\ns_mov_b32 s{SB+3}, 0x20000')
    a('s_mul_i32 s58, s54, 40')
    a(f'v_mad_u32_u24 v11, v{vG}, 10, s58')
    a(f'v_lshlrev_b32 v{vXO}, 1, v11')
    a(f'v_mul_lo_u32 v{vL1}, v11, s56')
    a(f'v_lshl_add_u32 v{vL1}, v{vI}, 4, v{vL1}\nv_add_u32 v{vL1}, s57, v{vL1}')
    a(f's_mul_i32 s68, s55, 18\ns_add_u32 s68, s68, s53\ns_lshl_b32 s68, s68, 4\ns_add_u32 s68, s68, s54\ns_lshl_b32 s68, s68, 9\ns_add_u32 s68, s68, {WS_HA}')
    a('s_cmp_lt_u32 s53, 8')
    a('s_waitcnt lgkmcnt(0)')
    a(f's_cselect_b32 s{SA}, s10, s16\ns_cselect_b32 s{SA+1}, s11, s17')
    a(f's_mov_b64 s[{SB}:{SB+1}], s[4:5]')
    x0 = P.vm(f'buffer_load_dwordx4 {vr(X)}, v{vXO}, {S(SB)}, 0 offen')
    x1 = P.vm(f'buffer_load_dword v{X+4}, v{vXO}, {S(SB)}, 0 offen offset:16')
    l1 = []
    a('s_mov_b32 s58, 0')
    for i in range(10):
        l1.append(P.vm(f'buffer_load_dwordx4 {vr(W+4*i)}, v{vL1}, {S(SA)}, s58 offen {ldflag}'))
        if i < 9: a('s_add_u32 s58, s58, s56')
    a('s_load_dword s60, s[30:31], 0')
    P.stamp()
    srd(SC, 6, 1 << 28); srd(SD, 8, 1 << 28); srd(SW, 30, 1 << 30)
    a(f'v_lshlrev_b32 v11, 4, v0')
    for r in range(4):
        a(f'v_add_u32 v{vVo[r]}, {r*4096}, v11')
    for r in range(4):
        a(f'v_lshl_add_u32 v12, v{vG}, 2, {r}\nv_xor_b32 v12, v12, v{vI}\nv_lshlrev_b32 v12, 4, v12\nv_lshl_add_u32 v12, v{vG}, 8, v12\nv_add_u32 v{vKo[r]}, {r*4096}, v12')
    a(f's_lshr_b32 s56, s2, 4\ns_lshl_b32 s56, s56, 24\ns_and_b32 s57, s2, 15\ns_lshl_b32 s57, s57, 16\ns_add_u32 s56, s56, s57\ns_lshl_b32 s57, s3, 10\ns_add_u32 s56, s56, s57\ns_add_u32 s56, s56, {61440*256}')
    for T in range(4):
        a(f's_add_u32 s57, s2, {T}\ns_and_b32 s57, s57, 3\ns_lshl_b32 s57, s57, 14\ns_add_u32 s{52+T}, s56, s57')
    a('s_lshl_b32 s57, s3, 14\ns_mov_b32 m0, s57')
    kl = []
    def issue_k(n0, n1):
        for n in range(n0, n1):
            T, r = n >> 2, n & 3
            P.cap(cap)
            kl.append(P.vm(f'buffer_load_dwordx4 v{vKo[r]}, {S(SC)}, s{52+T} offen {ldflag} lds'))
            a('s_add_u32 m0, m0, 1024')
            a('s_nop 0')
    issue_k(0, 4)
    selectors(); consts()
    issue_k(4, l1_after_k)
    P.wait(l1[-1])
    P.stamp()
    for i in range(10):
        Ax = A0 if i % 2 == 0 else A1
        buildA(Ax, X + (i >> 1), i & 1)
        a('s_nop 1')
        a(f'v_mfma_f32_16x16x32_bf16 {vr(ACC)}, {vr(Ax)}, {vr(W+4*i)}, ' + ('0' if i == 0 else vr(ACC)))
    a('s_waitcnt lgkmcnt(0)')
    a(f's_add_u32 s{sT}, s{sT}, 0x01010101\nv_mov_b32 v{vT}, s{sT}')
    a('s_nop 6')
    tag4(ACC, vT)
    a('s_mov_b32 exec_hi, 0')
    P.vm(f'buffer_store_dwordx4 {vr(ACC)}, v{vVo[0]}, {S(SW)}, s68 offen sc1')
    a('s_mov_b32 exec_hi, -1')
    a('s_barrier')
    P.stamp()
    issue_k(l1_after_k, 16)
    a(f'v_mul_u32_u24 v{vW2o}, 1152, v{vG}\nv_lshlrev_b32 v{vWOo}, 2, v{vW2o}')
    a(f's_lshl_b32 s57, s3, 8\nv_lshl_add_u32 v11, v{vI}, 4, s57')
    a(f'v_add_u32 v{vW2o}, v{vW2o}, v11\nv_add_u32 v{vWOo}, v{vWOo}, v11')
    srd(SA, 12, 4096 * 1152); srd(SB, 20, 4608 * 1152)
    a(f'v_and_b32 v11, 3, v{vI}\nv_lshrrev_b32 v12, 2, v{vI}\nv_lshl_add_u32 v11, v11, 2, v12\nv_lshlrev_b32 v11, 8, v11')
    a('s_lshl_b32 s57, s3, 14\nv_add_u32 v11, s57, v11')
    for kk in range(4):
        a(f'v_add_u32 v12, {kk*4}, v{vG}\nv_xor_b32 v12, v12, v{vI}\nv_lshl_add_u32 v{vKr[kk]}, v12, 4, v11')
    vl = []
    def issue_v(n0, n1, c=cap):
        for n in range(n0, n1):
            T, r = n >> 2, n & 3
            P.cap(c)
            vl.append(P.vm(f'buffer_load_dwordx4 {vr(V+4*n)}, v{vVo[r]}, {S(SD)}, s{52+T} offen {ldflag}'))
    wol = []; w2l = []
    def issue_wo(c):
        a(f's_mul_i32 s57, s2, {16*1152}')
        for rg in range(4):
            P.cap(c)
            wol.append(P.vm(f'buffer_load_dwordx4 {vr(W+4*rg)}, v{vWOo}, {S(SA)}, s57 offen offset:{rg*1152} {ldflag}'))
    def issue_w2(c):
        a(f's_and_b32 s58, s2, 1\ns_lshl_b32 s57, s58, 1\ns_mul_i32 s56, s2, 18\ns_add_u32 s57, s57, s56\ns_mul_i32 s57, s57, 1152')
        for rg in range(5):
            if rg == 4:
                a('s_cmp_eq_u32 s58, 1\ns_cselect_b32 s57, 0x40000000, s57')
            P.cap(c)
            w2l.append(P.vm(f'buffer_load_dwordx4 {vr(W+16+4*rg)}, v{vW2o}, {S(SB)}, s57 offen {ldflag}'))
            if rg < 4: a(f's_add_u32 s57, s57, {4*1152}')
    issue_v(0, s_after_v)
    if wo_before_s: issue_wo(0)
    P.stamp()
    P.wait(kl[-1])
    a('s_barrier')
    P.stamp()
    a(f'v_lshrrev_b32 v11, 3, v{vI}\nv_lshlrev_b32 v11, 8, v11\nv_lshl_add_u32 v11, v{vG}, 4, v11')
    a(f'v_add_u32 v11, {L_Q}, v11')
    for kk in range(4):
        a(f'ds_read_b128 {vr(QB+4*kk)}, v11 offset:{kk*64}')
    def kread(T):
        for kk in range(4):
            a(f'ds_read_b128 {vr(KF+(T&1)*16+4*kk)}, v{vKr[kk]} offset:{T*4096}')
    kread(0); kread(1)
    for T in range(4):
        a(f's_waitcnt lgkmcnt({4 if T < 3 else 0})')
        for kk in range(4):
            a(f'v_mfma_f32_16x16x32_bf16 {vr(SS+4*T)}, {vr(KF+(T&1)*16+4*kk)}, {vr(QB+4*kk)}, ' + ('0' if kk == 0 else vr(SS+4*T)))
        if T + 2 < 4: kread(T + 2)
    a('s_nop 7')
    vM, vL, vt = TMP, TMP + 1, TMP + 2
    a(f'v_max3_f32 v{vM}, v{SS}, v{SS+1}, v{SS+2}')
    for k in range(3, 15, 2):
        a(f'v_max3_f32 v{vM}, v{vM}, v{SS+k}, v{SS+k+1}')
    a(f'v_max_f32 v{vM}, v{vM}, v{SS+15}')
    xrow('v_max_f32', vM, vt)
    a(f's_mov_b32 s57, {CSC:#x}\nv_mul_f32 v{vt}, s57, v{vM}')
    for k in range(16):
        a(f'v_fma_f32 v{SS+k}, v{SS+k}, s57, -v{vt}')
    for k in range(16):
        a(f'v_exp_f32 v{SS+k}, v{SS+k}')
    a('s_nop 0')
    a(f'v_add_f32 v{vL}, v{SS}, v{SS+1}')
    for k in range(2, 16):
        a(f'v_add_f32 v{vL}, v{vL}, v{SS+k}')
    for k in range(8):
        a(f'v_cvt_pk_bf16_f32 v{QB+k}, v{SS+2*k}, v{SS+2*k+1}')
    PK = QB
    xrow('v_add_f32', vL, vt)
    a(f's_lshl_b32 s57, s3, 4\ns_add_u32 s57, s57, {L_ST}\nv_add_u32 v11, s57, v0')
    a('s_mov_b64 exec, 0x101')
    a(f'ds_write_b64 v11, v[{vM}:{vL}]')
    a('s_mov_b64 exec, -1')
    P.stamp()
    issue_v(s_after_v, 16, 0)
    if not wo_before_s: issue_wo(0)
    issue_w2(0)
    HC = TMP + 4
    a(f'v_lshlrev_b32 v11, 4, v{vG}\nv_add_u32 v11, {L_H}, v11\nds_read_b128 {vr(HC)}, v11')
    a(f'v_mov_b32 v12, {L_G}\nds_read_b64 v[{X}:{X+1}], v12')
    for n in range(16):
        Ax = A0 if n % 2 == 0 else A1
        buildA(Ax, PK + (n >> 1), n & 1)
        P.wait(vl[n])
        a('s_nop 0')
        a(f'v_mfma_f32_16x16x32_bf16 {vr(ACC)}, {vr(Ax)}, {vr(V+4*n)}, ' + ('0' if n == 0 else vr(ACC)))
    a(f'v_lshrrev_b32 v11, 1, v{vG}\nv_lshlrev_b32 v11, 9, v11\nv_lshl_add_u32 v11, v{vI}, 5, v11\nv_and_b32 v12, 1, v{vG}\nv_lshl_add_u32 v11, v12, 4, v11')
    a(f's_lshl_b32 s57, s3, 10\ns_add_u32 s57, s57, {L_OP}\nv_add_u32 v11, s57, v11')
    a('s_nop 1')
    a(f'ds_write_b128 v11, {vr(ACC)}')
    a('s_waitcnt lgkmcnt(0)')
    a('s_barrier')
    P.stamp()
    for rg in range(5):
        Ax = A0 if rg % 2 == 0 else A1
        buildA(Ax, HC + (rg >> 1), rg & 1)
        P.wait(w2l[rg])
        a('s_nop 0')
        a(f'v_mfma_f32_16x16x32_bf16 {vr(DB)}, {vr(Ax)}, {vr(W+16+4*rg)}, ' + ('0' if rg == 0 else vr(DB)))
    a(f'v_lshrrev_b32 v13, 2, v0\nv_lshlrev_b32 v13, 14, v13\nv_and_b32 v12, 3, v0\nv_lshl_add_u32 v13, v12, 4, v13')
    a(f's_lshl_b32 s56, s3, 17\ns_lshl_b32 s57, s2, 6\ns_add_u32 s56, s56, s57\ns_add_u32 s56, s56, {WS_HC}')
    a(f'v_lshlrev_b32 v11, 3, v{vG}\nv_add_u32 v11, {L_OC}, v11')
    a('s_nop 4')
    for k in range(4):
        a(f'v_mul_f32 v{DB+k}, v{X+1}, v{DB+k}')
    P.stamp()
    a('s_barrier')
    P.stamp()
    a(f'ds_read_b64 v[{HC}:{HC+1}], v11\ns_waitcnt lgkmcnt(0)')
    for rg in range(4):
        Ax = A0 if rg % 2 == 0 else A1
        buildA(Ax, HC + (rg >> 1), rg & 1)
        a('s_nop 1')
        a(f'v_mfma_f32_16x16x32_bf16 {vr(DA)}, {vr(Ax)}, {vr(W+4*rg)}, ' + ('0' if rg == 0 else vr(DA)))
    a('s_nop 7')
    for k in range(4):
        a(f'v_fma_f32 v{DA+k}, v{DA+k}, v{X}, v{DB+k}')
    tag4(DA, vT)
    a('s_mov_b32 exec_hi, 0')
    P.vm(f'buffer_store_dwordx4 {vr(DA)}, v13, {S(SW)}, s56 offen sc1')
    a('s_mov_b32 exec_hi, -1')
    P.stamp()
    a('s_cmp_ge_u32 s2, 36\ns_cbranch_scc1 L_stream_done')
    a(f's_lshl_b32 s56, s2, 14\ns_lshl_b32 s57, s3, 12\ns_add_u32 s56, s56, s57\ns_add_u32 s56, s56, {WS_HC}')
    a(f's_mov_b32 s{sTO}, 0x200000')
    a('L_pollC:')
    for i in range(4):
        a(f'buffer_load_dwordx4 {vr(V+4*i)}, v{vVo[0]}, {S(SW)}, s56 offen offset:{i*1024} sc1')
    a('s_mov_b64 s[70:71], -1')
    for i in range(4):
        a(f's_waitcnt vmcnt({3-i})')
        gtag(11, V + 4 * i)
        a(f'v_cmp_eq_u32 vcc, v11, v{vT}\ns_nop 1\ns_and_b64 s[70:71], s[70:71], vcc')
    a(f's_sub_u32 s{sTO}, s{sTO}, 1\ns_cbranch_scc1 L_pollC_done')
    a('s_cmp_eq_u64 s[70:71], -1\ns_cbranch_scc0 L_pollC')
    a('L_pollC_done:')
    for k in range(4):
        a(f'v_add_f32 v{V+k}, v{V+k}, v{V+4+k}\nv_add_f32 v{V+8+k}, v{V+8+k}, v{V+12+k}')
    for k in range(4):
        a(f'v_add_f32 v{V+k}, v{V+k}, v{V+8+k}')
    rowred('v_add_f32', [V, V + 1, V + 2, V + 3], (8, 4))
    a(f'v_lshlrev_b32 v11, 6, v{vG}\nv_lshl_add_u32 v11, v{vI}, 4, v11\ns_lshl_b32 s57, s3, 8\ns_add_u32 s57, s57, {L_FC}\nv_add_u32 v11, s57, v11')
    a('s_mov_b32 exec_lo, 0x000f000f\ns_mov_b32 exec_hi, 0x000f000f')
    a(f'ds_write_b128 v11, {vr(V)}')
    a('s_waitcnt lgkmcnt(0)')
    a('s_barrier')
    a('L_stream_done:')
    P.stamp()
    dump_stamps(P, 0)
    a('s_endpgm')

    a('L_service:')
    P = Path(a, stamps)
    a('s_setprio 3')
    XG = 32
    WO4 = 48
    W24 = 64
    QP = 84
    HP = 144
    B1 = 152; B2 = 153
    A0, A1 = 156, 160
    DA, DB = 164, 168
    vT = 31
    vL16 = 15; vHo = 16; vHo2 = 17; vQo = 18
    a(f'v_lshlrev_b32 v{vL16}, 4, v0')
    a('s_waitcnt lgkmcnt(0)')
    a('s_load_dword s60, s[30:31], 0')
    srd(SA, 4, 1152); srd(SB, 24, 1152)
    xl = [P.vm(f'buffer_load_dwordx4 {vr(XG)}, v{vL16}, {S(SA)}, 0 offen'),
          P.vm(f'buffer_load_dwordx4 {vr(XG+4)}, v{vL16}, {S(SA)}, 0 offen offset:1024'),
          P.vm(f'buffer_load_dwordx4 {vr(XG+8)}, v{vL16}, {S(SB)}, 0 offen'),
          P.vm(f'buffer_load_dwordx4 {vr(XG+12)}, v{vL16}, {S(SB)}, 0 offen offset:1024')]
    srd(SW, 30, 1 << 30)
    a('s_and_b32 s53, s2, 1\ns_lshl_b32 s52, s53, 1\ns_mul_i32 s54, s2, 18\ns_add_u32 s52, s52, s54')
    a(f'v_and_b32 v11, 4, v0\nv_cmp_eq_u32 vcc, 0, v11\nv_mov_b32 v12, 4\ns_nop 0\nv_cndmask_b32 v19, v12, v{vG}, vcc')
    a('v_and_b32 v20, 3, v0')
    a('v_lshl_add_u32 v11, v19, 2, v20\nv_add_u32 v11, s52, v11\nv_lshlrev_b32 v11, 1, v11')
    srd(SC, 18, 4608 * 2)
    b1l = P.vm(f'buffer_load_ushort v{B1}, v11, {S(SC)}, 0 offen')
    a('s_lshr_b32 s54, s2, 3\ns_and_b32 s55, s2, 7\ns_cmp_eq_u32 s54, 4\ns_cselect_b32 s56, 1, 2\ns_cselect_b32 s57, 1, 3')
    a('s_lshr_b32 s56, s55, s56\ns_and_b32 s57, s55, s57')
    a('s_lshl_b32 s54, s54, 7\ns_lshl_b32 s56, s56, 2\ns_lshl_b32 s57, s57, 5\ns_add_u32 s54, s54, s56\ns_add_u32 s54, s54, s57')
    a(f'v_lshrrev_b32 v11, 2, v{vI}\nv_lshl_add_u32 v11, v11, 3, v20\nv_add_u32 v11, s54, v11\nv_lshlrev_b32 v21, 1, v11')
    srd(SD, 22, 1152)
    b2l = P.vm(f'buffer_load_ushort v{B2}, v21, {S(SD)}, 0 offen')
    a(f'v_mul_u32_u24 v11, 1152, v{vG}\nv_lshl_add_u32 v12, v{vI}, 4, v11\nv_lshlrev_b32 v11, 2, v11\nv_lshl_add_u32 v13, v{vI}, 4, v11')
    a(f'v_cmp_gt_u32 vcc, 8, v{vI}\nv_mov_b32 v14, 0x40000000\nv_add_u32 v12, 1024, v12\nv_add_u32 v13, 1024, v13')
    a('v_cndmask_b32 v12, v14, v12, vcc\nv_cndmask_b32 v13, v14, v13, vcc')
    srd(SA, 12, 4096 * 1152); srd(SB, 20, 4608 * 1152)
    a(f's_mul_i32 s57, s2, {16*1152}')
    wol = [P.vm(f'buffer_load_dwordx4 {vr(WO4+4*rg)}, v13, {S(SA)}, s57 offen offset:{rg*1152} {ldflag}') for rg in range(4)]
    a('s_mul_i32 s57, s52, 1152')
    w2l = []
    for rg in range(5):
        if rg == 4: a('s_cmp_eq_u32 s53, 1\ns_cselect_b32 s57, 0x40000000, s57')
        w2l.append(P.vm(f'buffer_load_dwordx4 {vr(W24+4*rg)}, v12, {S(SB)}, s57 offen {ldflag}'))
        if rg < 4: a(f's_add_u32 s57, s57, {4*1152}')
    selectors(); consts()
    P.wait(xl[3])
    a('v_mov_b32 v22, 0')
    for k in range(8):
        a(f'v_lshlrev_b32 v11, 16, v{XG+k}\nv_lshlrev_b32 v12, 16, v{XG+8+k}\nv_and_b32 v13, 0xffff0000, v{XG+k}\nv_and_b32 v14, 0xffff0000, v{XG+8+k}')
        a('v_mul_f32 v11, v11, v12\nv_mul_f32 v13, v13, v14\nv_cvt_pk_bf16_f32 v11, v11, v13')
        a('v_lshlrev_b32 v12, 16, v11\nv_and_b32 v13, 0xffff0000, v11\nv_add_f32 v22, v22, v12\nv_add_f32 v22, v22, v13')
    rowred('v_add_f32', [22])
    xrow('v_add_f32', 22, 11)
    a('v_cvt_pk_bf16_f32 v22, v22, v22\nv_and_b32 v22, 0xffff0000, v22')
    a(f'v_mul_f32 v22, {f2u(-LOG2E):#x}, v22\nv_exp_f32 v22, v22\ns_nop 0\nv_add_f32 v22, 1.0, v22\nv_rcp_f32 v22, v22\ns_nop 0')
    a('v_cvt_pk_bf16_f32 v22, v22, v22\nv_and_b32 v22, 0xffff0000, v22')
    a('v_sub_f32 v23, 1.0, v22\nv_cvt_pk_bf16_f32 v23, v23, v23\nv_and_b32 v23, 0xffff0000, v23')
    a(f'v_mov_b32 v11, {L_G}\nds_write_b64 v11, v[22:23]')
    a('s_lshr_b32 s54, s2, 6\ns_mul_i32 s54, s54, 18\ns_bfe_u32 s55, s2, 0x20004\ns_lshl_b32 s55, s55, 1\ns_add_u32 s55, s55, s54\ns_lshl_b32 s55, s55, 13')
    a(f's_add_u32 s68, s55, {WS_HA}\ns_add_u32 s69, s68, 4096')
    a(f'v_lshrrev_b32 v11, 5, v0\nv_lshlrev_b32 v11, 13, v11\nv_and_b32 v12, 31, v0\nv_lshl_add_u32 v{vQo}, v12, 4, v11')
    a('s_lshr_b32 s55, s2, 6\ns_mul_i32 s55, s55, 1152\ns_sub_u32 s55, s52, s55\ns_lshr_b32 s55, s55, 2')
    a(f's_add_u32 s54, s54, 8\ns_lshl_b32 s54, s54, 13\ns_add_u32 s72, s54, {WS_HA}')
    for (dst, rgsrc) in ((vHo, f'v{vG}'), (vHo2, '4')):
        a(f'v_mov_b32 v11, {rgsrc}\nv_add_u32 v11, s55, v11')
        a(f'v_lshrrev_b32 v12, 5, v11\nv_lshlrev_b32 v12, 13, v12\nv_lshl_add_u32 v12, v{vI}, 9, v12')
        a(f'v_and_b32 v13, 1, v11\nv_lshl_add_u32 v12, v13, 8, v12\nv_bfe_u32 v13, v11, 1, 4\nv_lshl_add_u32 v{dst}, v13, 4, v12')
    for k in range(8): a(f'v_mov_b32 v{HP+k}, 0')
    a('s_cmp_eq_u32 s53, 0\ns_cselect_b32 s73, 0x7fff, 0')
    a('s_waitcnt lgkmcnt(0)')
    a(f's_add_u32 s{sT}, s{sT}, 0x01010101\nv_mov_b32 v{vT}, s{sT}')
    P.stamp()
    a('s_barrier')
    P.stamp()
    def qload(p):
        so, im = ('s68', p * 512) if p < 8 else ('s69', (p - 8) * 512)
        a(f'buffer_load_dwordx4 {vr(QP+4*p)}, v{vQo}, {S(SW)}, {so} offen offset:{im} sc1')
    for p in range(15): qload(p)
    a('s_mov_b32 s56, 0x7fff7fff\ns_mov_b32 s57, 0x7fff7fff\ns_mov_b32 s54, s73\ns_mov_b32 s55, 0')
    a('s_mov_b64 exec, s[56:57]')
    a(f'buffer_load_dwordx4 {vr(HP)}, v{vHo}, {S(SW)}, s72 offen sc1')
    a('s_mov_b64 exec, s[54:55]\ns_cbranch_execz L_pa_first')
    a(f'buffer_load_dwordx4 {vr(HP+4)}, v{vHo2}, {S(SW)}, s72 offen sc1')
    a('L_pa_first:\ns_mov_b64 exec, -1')
    a(f's_mov_b32 s{sTO}, 0x200000')
    a('L_pollA:')
    a('s_waitcnt vmcnt(0)')
    a('s_mov_b64 s[70:71], 0')
    for p in range(17):
        b = QP + 4 * p if p < 15 else HP + 4 * (p - 15)
        gtag(11, b)
        a(f'v_cmp_ne_u32 vcc, v11, v{vT}\ns_nop 1')
        if p == 15: a('s_and_b64 exec, vcc, s[56:57]')
        elif p == 16: a('s_and_b64 exec, vcc, s[54:55]')
        else: a('s_mov_b64 exec, vcc')
        a(f's_cbranch_execz L_pa{p}')
        a('s_or_b64 s[70:71], s[70:71], exec')
        if p < 15: qload(p)
        else: a(f'buffer_load_dwordx4 {vr(b)}, v{vHo if p == 15 else vHo2}, {S(SW)}, s72 offen sc1')
        a(f'L_pa{p}:\ns_mov_b64 exec, -1')
    a(f's_sub_u32 s{sTO}, s{sTO}, 1\ns_cbranch_scc1 L_pollA_done')
    a('s_cmp_lg_u64 s[70:71], 0\ns_cbranch_scc1 L_pollA')
    a('L_pollA_done:')
    a('s_waitcnt vmcnt(0)')
    P.stamp()
    for p in range(1, 15):
        for k in range(4):
            a(f'v_add_f32 v{QP+k}, v{QP+k}, v{QP+4*p+k}')
    a(f'v_cvt_pk_bf16_f32 v{QP}, v{QP}, v{QP+1}\nv_cvt_pk_bf16_f32 v{QP+1}, v{QP+2}, v{QP+3}')
    a(f'v_lshrrev_b32 v11, 5, v0\nv_lshlrev_b32 v11, 8, v11\nv_lshl_add_u32 v11, v{vI}, 4, v11\nv_and_b32 v12, 1, v{vG}\nv_lshl_add_u32 v11, v12, 3, v11')
    a(f'v_add_u32 v11, {L_Q}, v11\nds_write_b64 v11, v[{QP}:{QP+1}]')
    rowred('v_add_f32', [HP + k for k in range(8)])
    a('v_and_b32 v11, 7, v0')
    a(f'v_mov_b32 v12, v{HP}')
    for k in range(1, 8):
        a(f'v_cmp_eq_u32 vcc, {k}, v11\ns_nop 1\nv_cndmask_b32 v12, v12, v{HP+k}, vcc')
    a(f'v_cvt_pk_bf16_f32 v12, v12, v12\nv_and_b32 v12, 0xffff0000, v12\nv_lshlrev_b32 v13, 16, v{B1}\nv_add_f32 v12, v12, v13')
    a('v_cvt_pk_bf16_f32 v12, v12, v12\nv_and_b32 v12, 0xffff0000, v12')
    k1 = -2.0 * (2.0 / 3.141592653589793) ** 0.5 * LOG2E
    a(f'v_mul_f32 v13, v12, v12\nv_mov_b32 v14, {f2u(k1):#x}\ns_mov_b32 s57, {f2u(k1*0.044715):#x}\nv_fma_f32 v13, v13, s57, v14\nv_mul_f32 v13, v13, v12')
    a('v_exp_f32 v13, v13\ns_nop 0\nv_add_f32 v13, 1.0, v13\nv_rcp_f32 v13, v13\ns_nop 0\nv_mul_f32 v12, v12, v13')
    a('v_cvt_pk_bf16_f32 v12, v12, v12')
    a('v_cmp_eq_u32 vcc, 4, v19\ns_nop 3\ns_cmp_eq_u32 s53, 1\ns_cselect_b64 s[70:71], vcc, 0\nv_cndmask_b32 v12, v12, 0, s[70:71]')
    a(f'v_lshlrev_b32 v11, 4, v20\nv_lshl_add_u32 v11, v19, 1, v11\nv_add_u32 v11, {L_H}, v11')
    a('s_mov_b32 exec_lo, 0x000f00ff\ns_mov_b32 exec_hi, 0x000f000f')
    a('ds_write_b16 v11, v12')
    a('s_mov_b64 exec, -1')
    a('s_waitcnt lgkmcnt(0)')
    a('s_barrier')
    P.stamp()
    HC = 24
    a(f'v_lshlrev_b32 v11, 4, v{vG}\nv_add_u32 v11, {L_H}, v11\nds_read_b128 {vr(HC)}, v11\ns_waitcnt lgkmcnt(0)')
    for rg in range(5):
        Ax = A0 if rg % 2 == 0 else A1
        buildA(Ax, HC + (rg >> 1), rg & 1)
        a('s_nop 1')
        a(f'v_mfma_f32_16x16x32_bf16 {vr(DB)}, {vr(Ax)}, {vr(W24+4*rg)}, ' + ('0' if rg == 0 else vr(DB)))
    vPo, vCo, vCs = 16, 17, 18
    a(f'v_lshrrev_b32 v11, 2, v0\nv_lshlrev_b32 v11, 10, v11\nv_lshl_add_u32 v{vPo}, v20, 4, v11')
    a(f's_lshr_b32 s54, s2, 4\ns_and_b32 s55, s2, 15\ns_lshl_b32 s56, s54, 14\ns_lshl_b32 s57, s55, 6\ns_add_u32 s68, s56, s57\ns_add_u32 s68, s68, {WS_HBO}')
    a(f's_lshl_b32 s69, s2, 4\ns_add_u32 s69, s69, {WS_HBS}')
    a(f's_lshl_b32 s72, s2, 10\ns_add_u32 s72, s72, {WS_HBO}')
    a(f's_lshl_b32 s73, s54, 8\ns_add_u32 s73, s73, {WS_HBS}')
    a(f'v_lshlrev_b32 v11, 6, v{vI}\nv_lshl_add_u32 v{vCo}, v{vG}, 4, v11\nv_lshlrev_b32 v{vCs}, 4, v{vI}')
    vHCo = 28
    a(f'v_lshrrev_b32 v11, 2, v{vI}\nv_lshl_add_u32 v11, v{vG}, 1, v11\nv_lshlrev_b32 v11, 14, v11\nv_lshl_add_u32 v{vHCo}, v20, 4, v11')
    a(f'v_lshrrev_b32 v29, 5, v0\nv_lshlrev_b32 v29, 3, v29\nv_add_u32 v29, {L_ST}, v29')
    a(f'v_add_u32 v30, {L_OP}, v{vL16}')
    for k in range(4):
        a(f'v_mul_f32 v{DB+k}, v23, v{DB+k}')
    a('s_barrier')
    P.stamp()
    OPR = QP
    STR = QP + 16
    for w in range(4):
        a(f'ds_read_b64 v[{STR+2*w}:{STR+2*w+1}], v29 offset:{w*16}')
    for w in range(4):
        a(f'ds_read_b128 {vr(OPR+4*w)}, v30 offset:{w*1024}')
    a('s_waitcnt lgkmcnt(4)')
    a(f'v_max3_f32 v11, v{STR}, v{STR+2}, v{STR+4}\nv_max_f32 v11, v11, v{STR+6}')
    a(f'v_perm_b32 v12, v11, v{vT}, s{sSEL[0]}\nv_perm_b32 v13, v11, v{vT}, s{sSEL[2]}')
    a('v_cmp_gt_u32 vcc, 32, v0\ns_nop 1\nv_cndmask_b32 v11, v13, v12, vcc')
    a(f's_mov_b32 s57, {CSC:#x}')
    for w in range(4):
        a(f'v_sub_f32 v{STR+2*w}, v{STR+2*w}, v11\nv_mul_f32 v{STR+2*w}, s57, v{STR+2*w}')
    for w in range(4):
        a(f'v_exp_f32 v{STR+2*w}, v{STR+2*w}')
    a('s_waitcnt lgkmcnt(0)')
    for k in range(4):
        a(f'v_mul_f32 v{OPR+k}, v{OPR+k}, v{STR}')
    a(f'v_mul_f32 v12, v{STR+1}, v{STR}')
    for w in range(1, 4):
        for k in range(4):
            a(f'v_fmac_f32 v{OPR+k}, v{OPR+4*w+k}, v{STR+2*w}')
        a(f'v_fmac_f32 v12, v{STR+2*w+1}, v{STR+2*w}')
    tag4(OPR, vT)
    P.vm(f'buffer_store_dwordx4 {vr(OPR)}, v{vPo}, {S(SW)}, s68 offen sc1')
    SG = QP + 24
    a(f'v_mov_b32 v{SG}, v11\nv_mov_b32 v{SG+1}, v12\nv_mov_b32 v{SG+2}, v11\nv_mov_b32 v{SG+3}, v12\ns_nop 1')
    a(f'v_permlane32_swap_b32 v{SG}, v{SG+2}\nv_permlane32_swap_b32 v{SG+1}, v{SG+3}\ns_nop 1')
    a(f'v_perm_b32 v{SG+1}, v{SG+1}, v{vT}, s{sSEL[1]}\nv_perm_b32 v{SG+3}, v{SG+3}, v{vT}, s{sSEL[3]}')
    a('v_mov_b32 v13, 0\ns_mov_b64 exec, 1')
    P.vm(f'buffer_store_dwordx4 {vr(SG)}, v13, {S(SW)}, s69 offen sc1')
    a('s_mov_b64 exec, -1')
    P.stamp()
    CO = QP + 32; CS = QP + 36
    a(f's_mov_b32 s{sTO}, 0x200000')
    a('L_pollB:')
    a(f'buffer_load_dwordx4 {vr(CO)}, v{vCo}, {S(SW)}, s72 offen sc1')
    a(f'buffer_load_dwordx4 {vr(CS)}, v{vCs}, {S(SW)}, s73 offen sc1')
    a('s_waitcnt vmcnt(1)')
    gtag(11, CO)
    a(f'v_cmp_eq_u32 s[70:71], v11, v{vT}')
    a('s_waitcnt vmcnt(0)')
    gtag(12, CS)
    a(f'v_cmp_eq_u32 vcc, v12, v{vT}\ns_nop 1\ns_and_b64 s[70:71], s[70:71], vcc')
    a(f's_sub_u32 s{sTO}, s{sTO}, 1\ns_cbranch_scc1 L_pollB_done')
    a('s_cmp_eq_u64 s[70:71], -1\ns_cbranch_scc0 L_pollB')
    a('L_pollB_done:')
    P.stamp()
    a('s_bitcmp1_b32 s2, 3\ns_cselect_b64 vcc, -1, 0')
    a(f'v_cndmask_b32 v11, v{CS}, v{CS+2}, vcc\nv_cndmask_b32 v12, v{CS+1}, v{CS+3}, vcc')
    a('v_mov_b32 v13, v11')
    rowred('v_max_f32', [13])
    a(f'v_sub_f32 v11, v11, v13\nv_mul_f32 v11, s57, v11\nv_exp_f32 v11, v11\ns_nop 0')
    a('v_mul_f32 v12, v12, v11')
    for k in range(4):
        a(f'v_mul_f32 v{CO+k}, v{CO+k}, v11')
    rowred('v_add_f32', [12, CO, CO + 1, CO + 2, CO + 3])
    a('v_rcp_f32 v12, v12\ns_nop 0')
    for k in range(4):
        a(f'v_mul_f32 v{CO+k}, v{CO+k}, v12')
    a(f'v_cvt_pk_bf16_f32 v{HC}, v{CO}, v{CO+1}\nv_cvt_pk_bf16_f32 v{HC+1}, v{CO+2}, v{CO+3}')
    a(f'v_lshlrev_b32 v11, 3, v{vG}\nv_add_u32 v11, {L_OC}, v11')
    a('s_mov_b32 exec_lo, 0x00010001\ns_mov_b32 exec_hi, 0x00010001')
    a(f'ds_write_b64 v11, v[{HC}:{HC+1}]')
    a('s_mov_b64 exec, -1')
    a('s_waitcnt lgkmcnt(0)')
    a('s_barrier')
    P.stamp()
    for rg in range(4):
        Ax = A0 if rg % 2 == 0 else A1
        buildA(Ax, HC + (rg >> 1), rg & 1)
        a('s_nop 1')
        a(f'v_mfma_f32_16x16x32_bf16 {vr(DA)}, {vr(Ax)}, {vr(WO4+4*rg)}, ' + ('0' if rg == 0 else vr(DA)))
    a(f's_lshl_b32 s56, s2, 6\ns_add_u32 s56, s56, {WS_HC + 32*16384}')
    a('s_nop 6')
    for k in range(4):
        a(f'v_fma_f32 v{DA+k}, v{DA+k}, v22, v{DB+k}')
    tag4(DA, vT)
    a('s_mov_b32 exec_lo, 0x00ff00ff\ns_mov_b32 exec_hi, 0')
    P.vm(f'buffer_store_dwordx4 {vr(DA)}, v{vHCo}, {S(SW)}, s56 offen sc1')
    a('s_mov_b64 exec, -1')
    P.stamp()
    a('s_cmp_ge_u32 s2, 36\ns_cbranch_scc1 L_service_done')
    srd(SD, 26, 1152)
    a(f'v_lshlrev_b32 v11, 8, v{vG}\nv_lshl_add_u32 v11, v{vI}, 2, v11\nv_add_u32 v11, {L_FC}, v11')
    a(f'v_lshlrev_b32 v{B2}, 16, v{B2}')
    a('s_barrier')
    a('ds_read2_b32 v[32:33], v11 offset0:0 offset1:16\nds_read2_b32 v[34:35], v11 offset0:32 offset1:48\ns_waitcnt lgkmcnt(0)')
    a('v_add_f32 v32, v32, v33\nv_add_f32 v34, v34, v35\nv_add_f32 v32, v32, v34')
    xrow('v_add_f32', 32, 33)
    a(f'v_fma_f32 v32, v{B2}, v23, v32\nv_cvt_pk_bf16_f32 v32, v32, v32')
    a('s_mov_b64 exec, 0xffff')
    a(f'buffer_store_short v32, v21, {S(SD)}, 0 offen')
    a('s_cmp_lg_u32 s2, 0\ns_cbranch_scc1 L_service_done')
    a(f's_mov_b64 exec, 1\nv_mov_b32 v13, 0\nbuffer_store_dword v{vT}, v13, {S(SW)}, 0 offen sc1')
    a('L_service_done:')
    P.stamp()
    dump_stamps(P, 4)
    a('L_end:\ns_endpgm')
    hdr = open('gated_mix__sliding_block_cached__dense_activation_gelu__decode.s.ref').read().split('; Override launch')[0]
    txt = hdr + HDR.format(gx=256, bx=320, lds=LDS_BYTES, name=NAME) + a.text() + FTR.format(name=NAME, vgpr=NV, sgpr=102, accum=NV)
    open(path, 'w').write(txt)
    build(path, NAME)
    print('built', path)

if __name__ == '__main__':
    for j in range(256): assert (j * 4370) >> 16 == j // 15
    gen('k1.s', stamps=False)
    gen('k1s.s', stamps=True)
    gen('p_0.s', stamps=True, probe=(4, 0, 1, 0))
    gen('p_end.s', stamps=True, probe=(4, 12, 1, 0))
    gen('p_w1.s', stamps=True, probe=(0, 1, 4, 0))
    gen('p_w2.s', stamps=True, probe=(0, 2, 2, 0))
    gen('p_w5.s', stamps=True, probe=(0, 5, 1, 0))
    gen('p_w8.s', stamps=True, probe=(0, 8, 1, 0))
```

```python
import sys, os, struct
sys.path.insert(0, 'bench')
from common import *
NAME = 'gated_mix__sliding_block_cached__dense_activation_gelu__decode_kernel'

WS_ID  = 0x1000
WS_HA1 = 0x10000
WS_HA2 = 0x30000
WS_HBO = 0x50000
WS_HBS = 0x90000
WS_HC1 = 0xA0000
WS_AC  = 0x130000
WS_FL  = 0x134000
WS_ALT = 0x140000
WS_STAMP = 0x20000000
L_Q  = 65536
L_PW = L_Q + 512
L_QF = L_PW + 16
L_MD = L_PW + 24
L_G  = L_PW + 32
L_CN = L_PW + 40
L_GO = L_PW + 44
L_FF = L_PW + 48
L_H  = L_PW + 64
L_OC = L_H + 64
L_ST = L_OC + 64
L_FW = L_ST + 64
L_OW = L_FW + 32
L_OP = L_OW + 64
LDS_BYTES = L_OP + 4096
OOB = 0x40000000
TMO = 0x2000000
NW = 6
LOG2E = 1.4426950408889634
def f2u(x): return struct.unpack('<I', struct.pack('<f', x))[0]
CSC = f2u(LOG2E / (128 ** 0.5))

DOC = """;
; The last step adds {sum, count} pairs with returning f64 atomics; the last arriver of a pair writes that output.
"""
class Path:
    def __init__(self, a, stamps):
        self.a = a; self.n = 0; self.st = 0; self.stamps = stamps; self.names = ['start']
    def vm(self, text):
        self.a(text); self.n += 1; return self.n - 1
    def wait(self, idx):
        k = self.n - 1 - idx
        assert 0 <= k <= 63, k
        self.a(f's_waitcnt vmcnt({k})')
    def cap(self, c):
        if c and self.n >= c: self.a(f's_waitcnt vmcnt({c-1})')
    def stamp(self, name='-'):
        if self.stamps:
            assert self.st < 12, name
            self.a(f's_memrealtime s[{76+2*self.st}:{77+2*self.st}]')
            self.st += 1; self.names.append(name)

def vr(b, n=4): return f'v[{b}:{b+n-1}]'

def gen(path, stamps=False, capK=6, capV=6, capW=3, capG=7, l1_after_k=5, t1=12, t2=14, t3=32, s_after_v=6, pre_s=1, fw_at=10, pipe=2,
        force_slow=False, hostile=False, jit=0, touch=True, idsh=3, pre_early=True, spec=False, ha2=True):
    a = Asm()
    def c(text): a.lines.append('    ; ' + text)
    SA, SB, SC, SD, SW = 32, 36, 40, 44, 48
    def srd(slot, ptr, size):
        a(f's_mov_b64 s[{slot}:{slot+1}], s[{ptr}:{ptr+1}]\ns_mov_b32 s{slot+2}, {size}\ns_mov_b32 s{slot+3}, 0x20000')
    def S(slot): return f's[{slot}:{slot+3}]'
    sT = 60; sSEL = [61, 62, 63, 64]; sG01, sG2, sG3 = 65, 66, 67; sTO = 59
    sL = 100; sMD = 101; sMK = 10
    vG, vI, vL1, vT = 9, 10, 16, 31
    jn = [0]
    def jitter():
        if not jit: return
        jn[0] += 1
        a(f's_memrealtime s[90:91]\ns_waitcnt lgkmcnt(0)\ns_lshl_b32 s92, s2, 3\ns_add_u32 s92, s92, s3\ns_add_u32 s92, s92, {jn[0]*4099}')
        a('s_lshr_b32 s93, s90, 12\ns_mul_i32 s92, s92, 0x85ebca6b\ns_xor_b32 s92, s92, s93\ns_mul_i32 s92, s92, 0x9e3779b1\ns_lshr_b32 s93, s92, 25\ns_lshr_b32 s92, s92, 8\ns_and_b32 s92, s92, 0x3ff\ns_cmp_eq_u32 s93, 0\ns_cselect_b32 s92, s92, 0\ns_add_u32 s92, s92, s90')
        a(f'L_jit{jn[0]}:\ns_memrealtime s[90:91]\ns_waitcnt lgkmcnt(0)\ns_sub_u32 s93, s90, s92\ns_cmp_lt_i32 s93, 0\ns_cbranch_scc1 L_jit{jn[0]}')
    c('logical id L = (wg & 7) * 32 + (wg >> 3): domain = L >> 5, kv head = L >> 4, member = L & 15')
    a('s_load_dwordx16 s[4:19], s[0:1], 0\ns_load_dwordx8 s[20:27], s[0:1], 64\ns_load_dwordx4 s[28:31], s[0:1], 96')
    if stamps: a('s_memrealtime s[74:75]')
    a('s_cmp_ge_u32 s2, 256\ns_cbranch_scc1 L_end')
    a('v_lshrrev_b32 v1, 6, v0\nv_lshrrev_b32 v11, 4, v0')
    a('v_readfirstlane_b32 s3, v1')
    if hostile: a(f's_mov_b32 s{sL}, s2')
    else: a(f's_and_b32 s{sL}, s2, 7\ns_lshl_b32 s{sL}, s{sL}, 5\ns_lshr_b32 s52, s2, 3\ns_or_b32 s{sL}, s{sL}, s52')
    a(f'v_and_b32 v{vI}, 15, v0\ns_mov_b32 s{sTO}, {TMO}')
    jitter()
    a('s_cmp_ge_u32 s3, 4\ns_cbranch_scc1 L_stub')

    def tile(d, t):
        a(f's_and_b32 {t}, s{sL}, 0x18\ns_lshr_b32 {t}, 0x01030200, {t}\ns_and_b32 {t}, {t}, 3\ns_lshr_b32 {d}, s{sL}, 5\ns_lshl_b32 {d}, {d}, 2\ns_add_u32 {d}, {d}, {t}')
    def selectors():
        c('byte selectors that place one bf16 on the diagonal of an MFMA A operand (v1..4 low half, v5..8 high half)')
        a(f'v_and_b32 v11, 1, v{vI}\nv_cmp_eq_u32 vcc, 1, v11')
        a('v_mov_b32 v12, 0x0c0c0100\nv_mov_b32 v13, 0x01000c0c')
        a('v_cndmask_b32 v12, v12, v13, vcc')
        a('v_mov_b32 v14, 0x0c0c0302\nv_mov_b32 v13, 0x03020c0c')
        a('v_cndmask_b32 v13, v14, v13, vcc')
        a(f'v_bfe_u32 v11, v{vI}, 1, 2')
        a('v_mov_b32 v14, 0x0c0c0c0c')
        for r in range(4):
            a(f'v_cmp_eq_u32 vcc, {r}, v11\ns_nop 1')
            a(f'v_cndmask_b32 v{1+r}, v14, v12, vcc\nv_cndmask_b32 v{5+r}, v14, v13, vcc')
    def consts(gather=True):
        for k in range(4):
            a(f's_mov_b32 s{sSEL[k]}, {0x07060500 + k:#x}')
        if gather: a(f's_mov_b32 s{sG01}, 0x0c0c0400\ns_mov_b32 s{sG2}, 0x0c040100\ns_mov_b32 s{sG3}, 0x04020100')
    def buildA(dst, src, hi):
        for r in range(4):
            a(f'v_perm_b32 v{dst+r}, v{src}, v{src}, v{(5 if hi else 1)+r}')
    def tag4(b):
        for k in range(4):
            a(f'v_perm_b32 v{b+k}, v{b+k}, v{vT}, s{sSEL[k]}')
    def bad(dst, b):
        a(f'v_perm_b32 v11, v{b+1}, v{b}, s{sG01}\nv_perm_b32 v11, v{b+2}, v11, s{sG2}\nv_perm_b32 v11, v{b+3}, v11, s{sG3}')
        a(f'v_cmp_ne_u32 {dst}, v11, v{vT}')
    def untag(d, b, n=4):
        for k in range(n): a(f'v_and_b32 v{d+k}, s{sMK}, v{b+k}')
    def xrow(op, v, t):
        a(f'v_mov_b32 v{t}, v{v}\ns_nop 1\nv_permlane16_swap_b32 v{v}, v{t}\n{op} v{v}, v{v}, v{t}')
        a(f'v_mov_b32 v{t}, v{v}\ns_nop 1\nv_permlane32_swap_b32 v{v}, v{t}\n{op} v{v}, v{v}, v{t}')
    def rowred(op, regs, rots=(8, 4, 2, 1)):
        for rot in rots:
            if len(regs) < 3: a('s_nop 1')
            for v in regs:
                a(f'{op}_dpp v{v}, v{v}, v{v} row_ror:{rot} row_mask:0xf bank_mask:0xf')
    def mfma(d, A, B, first):
        a(f'v_mfma_f32_16x16x32_bf16 {vr(d)}, {vr(A)}, {vr(B)}, ' + ('0' if first else vr(d)))
    def pkadd(d, x, y=None):
        y = d if y is None else y
        a(f'v_pk_add_f32 v[{d}:{d+1}], v[{y}:{y+1}], v[{x}:{x+1}]\nv_pk_add_f32 v[{d+2}:{d+3}], v[{y+2}:{y+3}], v[{x+2}:{x+3}]')
    def again(lab, w=1):
        a(f's_sub_u32 s{sTO}, s{sTO}, {w}\ns_cbranch_scc0 {lab}\ns_mov_b32 s{sTO}, 0')
    names = {}
    def dump_stamps(P, widx):
        if not stamps: return
        while P.st < 12: P.stamp('end')
        names[widx] = P.names
        a('s_waitcnt lgkmcnt(0)')
        a(f's_add_u32 s52, s74, 1400\nL_hold{widx}:\ns_sleep 8\ns_memrealtime s[54:55]\ns_waitcnt lgkmcnt(0)\ns_sub_u32 s53, s54, s52\ns_cmp_lt_i32 s53, 0\ns_cbranch_scc1 L_hold{widx}')
        a(f's_mul_i32 s52, s2, {NW}\ns_add_u32 s52, s52, s3\ns_mul_i32 s52, s52, 128\ns_add_u32 s52, s52, {WS_STAMP}')
        a('s_mov_b64 exec, 1\nv_mov_b32 v1, 0')
        for i in range(13):
            a(f'v_mov_b32 v4, s{74+2*i}\nv_mov_b32 v5, s{75+2*i}')
            a(f'buffer_store_dwordx2 v[4:5], v1, {S(SW)}, s52 offen offset:{i*8}\ns_nop 1')
    def issue(items):
        for b, txt, m in items:
            if m: a(f's_mov_b64 exec, {m}')
            a(txt)
            if m: a('s_mov_b64 exec, -1')
    def poll(lab, items, each=None):
        a(f'{lab}:\ns_waitcnt vmcnt(0)')
        if each: each(lab + '_id')
        a('s_mov_b64 s[70:71], 0')
        for p, (b, txt, m) in enumerate(items):
            bad('vcc', b)
            a(f's_and_b64 exec, vcc, {m if m else -1}')
            a(f's_cbranch_execz {lab}_{p}')
            a('s_or_b64 s[70:71], s[70:71], exec')
            a(txt)
            a(f'{lab}_{p}:\ns_mov_b64 exec, -1')
        a(f's_cmp_eq_u64 s[70:71], 0\ns_cbranch_scc1 {lab}_done')
        again(lab, 8)
        a(f's_waitcnt vmcnt(0)\n{lab}_done:')
    far = []
    def publish(lab, data, voff, soff):
        a(f's_cbranch_scc0 {lab}_w\nbuffer_store_dwordx4 {vr(data)}, v{voff}, {S(SW)}, s{soff} offen\n{lab}_r:')
        far.append(f'{lab}_w:\nbuffer_store_dwordx4 {vr(data)}, v{voff}, {S(SW)}, s{soff} offen sc1\ns_branch {lab}_r')
    def mode_scc(): a(f's_cmp_eq_u32 s{sMD}, 1')
    def flush_far():
        for t in far: a(t)
        far.clear()
    PWR = 160
    def waitpw(lab, stage, extra='', sleep=1):
        a(f'{lab}:\nds_read_b128 {vr(PWR)}, v29')
        if extra: a(extra)
        a('s_waitcnt lgkmcnt(0)')
        a(f'v_min3_u32 v11, v{PWR}, v{PWR+1}, v{PWR+2}\nv_min_u32 v11, v11, v{PWR+3}\nv_cmp_le_u32 vcc, {stage}, v11')
        a(f's_cbranch_vccnz {lab}_ok\ns_sleep {sleep}')
        again(lab, 2)
        a(f'{lab}_ok:')
        jitter()

    c('================ streaming waves 0..3 ================')
    P = Path(a, stamps)
    vWo, vWe = 17, 18
    vKo = [19, 20, 21, 22]; vVo = 23; vHC = 24; vLG = 25; vKr = [27, 28, 29, 30]
    vPW, vPV = 15, 26; A0, A1 = 32, 36; ACC = 40; DA = 44; TMP = 48
    W = 52; V = 88; SS = 152; NV = 168
    DB = SS; AX = SS + 4; X = SS + 8; KF = W; QB = V + 48
    sEX = 70
    stage = [0]; stages = {}
    def progress(name):
        stage[0] += 1; stages[name] = stage[0]
        a(f's_mov_b64 exec, 1\nv_add_u32 v{vPV}, 1, v{vPV}\nds_write_b32 v{vPW}, v{vPV}\ns_mov_b64 exec, -1')
        jitter()
    c('first layer: 128 columns of wq (even L) or w1 (odd L), rows part*144 + w*36 + 4i + g')
    a(f's_bfe_u32 s52, s{sL}, 0x20001\ns_lshl_b32 s52, s52, 2\ns_add_u32 s52, s52, s3\ns_mul_i32 s52, s52, 36\nv_and_b32 v{vG}, 3, v11\nv_add_u32 v11, s52, v{vG}')
    a(f's_and_b32 s56, s{sL}, 1\ns_add_u32 s56, s56, 8\ns_lshl_b32 s56, s56, 10')
    a(f's_mul_i32 s{SA+2}, s56, 576\ns_mov_b32 s{SA+3}, 0x20000\ns_movk_i32 s{SB+2}, 1152\ns_mov_b32 s{SB+3}, s{SA+3}')
    tile('s58', 's57')
    a('s_lshl_b32 s58, s58, 8')
    a(f'v_mul_u32_u24 v{vL1}, s56, v11\nv_lshl_add_u32 v{vL1}, v{vI}, 4, v{vL1}\ns_lshl_b32 s56, s56, 2')
    c('plus 24 rows of the 64 hidden columns 4096 + domain*64 ..')
    a(f'v_lshrrev_b32 v12, 3, v0\ns_and_b32 s53, s{sL}, 31\ns_mul_i32 s53, s53, 24\nv_cmp_gt_u32 vcc, 24, v12\nv_add_u32 v12, s53, v12')
    a(f'v_mul_u32_u24 v13, 9216, v12\nv_and_b32 v14, 7, v0\nv_lshl_add_u32 v13, v14, 4, v13\nv_mov_b32 v14, {OOB}\nv_cndmask_b32 v13, v14, v13, vcc')
    a(f's_lshr_b32 s69, s{sL}, 5\ns_lshl_b32 s69, s69, 7\ns_add_u32 s69, s69, 8192\ns_mov_b32 s{SD+2}, {576*9216}\ns_mov_b32 s{SD+3}, s{SA+3}')
    a(f's_bitcmp0_b32 s{sL}, 0')
    a('s_waitcnt lgkmcnt(0)')
    a(f's_cselect_b64 s[{SA}:{SA+1}], s[10:11], s[16:17]')
    for i in range(9):
        P.vm(f'buffer_load_dwordx4 {vr(W+4*i)}, v{vL1}, {S(SA)}, s58 offen nt')
        if i < 8: a('s_add_u32 s58, s58, s56')
    a(f's_mov_b64 s[{SD}:{SD+1}], s[16:17]')
    x1 = P.vm(f'buffer_load_dwordx4 {vr(DB)}, v13, {S(SD)}, s69 offen nt')
    P.stamp('L1iss')
    c('keep the pointers still needed, then fetch this wave\'s slice of x and the launch epoch through the scalar path')
    a(f's_mov_b64 s[{SB}:{SB+1}], s[4:5]\ns_mov_b64 s[22:23], s[12:13]')
    srd(SC, 6, 1 << 28); srd(SD, 8, 1 << 28); srd(SW, 30, 1 << 30)
    a(f's_lshl_b32 s52, s52, 1\ns_add_u32 s57, s52, 64\ns_lshl_b32 s56, s3, 3\ns_add_u32 s53, s53, s56\ns_lshl_b32 s53, s53, 1')
    a(f's_buffer_load_dwordx16 s[4:19], {S(SB)}, s52\ns_buffer_load_dwordx2 s[26:27], {S(SB)}, s57')
    for k in range(4):
        a(f's_buffer_load_dword s{28+k}, {S(SB)}, s53')
        if k < 3: a('s_add_u32 s53, s53, 4')
    a(f's_load_dword s{sT}, s[{SW}:{SW+1}], 0')
    a('s_barrier')
    a(f'v_and_b32 v0, 63, v0')
    c('K / V: 256 tokens per workgroup, 4 KB blocks visited in a rotated order, 1 KB per wave')
    a(f's_lshr_b32 s54, s{sL}, 4\ns_lshl_b32 s54, s54, 24\ns_and_b32 s52, s{sL}, 15\ns_lshl_b32 s57, s52, 16\ns_add_u32 s54, s54, s57\ns_lshl_b32 s57, s3, 10\ns_add_u32 s54, s54, s57\ns_add_u32 s54, s54, {61440*256}')
    a('s_lshl_b32 s52, s52, 12\ns_add_u32 s55, s54, s52')
    def nextblk(): a('s_add_u32 s52, s52, 4096\ns_and_b32 s52, s52, 0xffff\ns_add_u32 s55, s54, s52')
    a('s_lshl_b32 s57, s3, 14\ns_mov_b32 m0, s57')
    a(f'v_lshlrev_b32 v12, 2, v{vG}\nv_xor_b32 v12, v12, v{vI}\nv_lshlrev_b32 v12, 4, v12\nv_lshl_add_u32 v{vKo[0]}, v{vG}, 8, v12')
    for r in range(1, 4):
        a(f'v_xor_b32 v{vKo[r]}, {r*16}, v{vKo[0]}')
    kl = []; vl = []; nkv = [0]
    def trigger():
        nkv[0] += 1
        for nm, t in (('t1', t1), ('t2', t2), ('t3', t3)):
            if nkv[0] == t: progress(nm)
    def issue_k(n0, n1):
        for n in range(n0, n1):
            P.cap(capK)
            kl.append(P.vm(f'buffer_load_dwordx4 v{vKo[n & 3]}, {S(SC)}, s55 offen nt lds'))
            a('s_add_u32 m0, m0, 1024')
            nextblk()
            trigger()
    a(f'v_lshlrev_b32 v{vVo}, 4, v0')
    selectors(); consts(False)
    a(f's_lshl_b32 s57, s3, 10\ns_add_u32 s57, s57, {L_OP}\nv_add_u32 v{vWo}, s57, v{vVo}')
    a(f'v_and_b32 v12, 7, v0\nv_lshlrev_b32 v12, 4, v12\nv_lshl_add_u32 v12, v{vG}, 7, v12\nv_add_u32 v{vWe}, s57, v12')
    a(f's_lshl_b32 s57, s3, 2\ns_add_u32 s57, s57, {L_PW}\nv_mov_b32 v{vPW}, s57')
    for r in range(4):
        a(f'v_sub_u32 v12, v{5+r}, v{1+r}\nv_mul_lo_u32 v12, v12, v{vG}\nv_add_u32 v{X+r}, v12, v{1+r}')
    a(f'v_mov_b32 v{vPV}, 0\nv_and_b32 v12, 8, v0\nv_lshlrev_b32 v12, 1, v12')
    a(f's_waitcnt lgkmcnt(0)\ns_add_u32 s{sT}, s{sT}, 0x01010101\nv_mov_b32 v{vT}, s{sT}')
    c('A operands of the first layer, built while the weights are in flight')
    a(f'v_mov_b32 v{X+5}, s28\ns_mov_b32 exec_lo, 0xffff0000\nv_mov_b32 v{X+5}, s29\ns_mov_b32 exec_lo, 0\nv_mov_b32 v{X+5}, s30\ns_mov_b32 exec_hi, 0xffff0000\nv_mov_b32 v{X+5}, s31\ns_mov_b64 exec, -1')
    a(f'v_lshrrev_b32 v{X+5}, v12, v{X+5}')
    buildA(AX, X + 5, 0)
    for i in range(9):
        lo, hi = (4 + 2 * i, 5 + 2 * i) if i < 8 else (26, 27)
        a(f'v_mov_b32 v{X+4}, s{hi}')
        for r in range(4): a(f'v_perm_b32 v{V+4*i+r}, v{X+4}, s{lo}, v{X+r}')
    issue_k(0, l1_after_k)
    P.wait(x1)
    P.stamp('L1in')
    mfma(DA, AX, DB, True)
    for i in range(9):
        mfma(ACC, V + 4 * i, W + 4 * i, i == 0)
    a('s_mov_b32 exec_lo, 0x00ff00ff\ns_mov_b32 exec_hi, 0xff00ff00')
    a(f'ds_write_b128 v{vWe}, {vr(DA)} offset:512')
    a('s_mov_b32 exec_lo, -1\ns_mov_b32 exec_hi, 0\ns_nop 3')
    a(f'ds_write_b128 v{vWo}, {vr(ACC)}')
    progress('l1')
    P.stamp('L1out')
    assert t1 > l1_after_k
    issue_k(l1_after_k, 16)
    def waddr(tile_s, half):
        c('second layer: rows L*16.. of wo and w2 (+ rows 4096 + 2L..), one column tile per wave')
        a(f'v_lshl_add_u32 v11, v{vI}, 4, {tile_s}')
        if half: a(f'v_cmp_gt_u32 vcc, 8, v{vI}\nv_mov_b32 v13, {OOB}\ns_nop 0\nv_cndmask_b32 v11, v13, v11, vcc')
        a(f'v_mul_u32_u24 v12, 1152, v{vG}\nv_lshl_add_u32 v{vWo}, v12, 2, v11\nv_add_u32 v12, v12, v11')
        a(f'v_cmp_gt_u32 vcc, 2, v{vG}\nv_mov_b32 v13, {OOB}\ns_nop 0\nv_cndmask_b32 v{vWe}, v13, v12, vcc')
        srd(SA, 12 if half else 22, 4096 * 1152); srd(SB, 20, 4608 * 1152)
        a(f's_mul_i32 s68, s{sL}, {16*1152}\ns_mul_i32 s69, s{sL}, {2*1152}\ns_add_u32 s69, s69, {4096*1152}')
        if half: a(f'v_lshlrev_b32 v11, 12, v{vG}\ns_mov_b32 s{sEX}, 0x00ff00ff\ns_mov_b32 s57, {16*4096}')
        else: a(f'v_lshrrev_b32 v11, 3, v0\nv_lshlrev_b32 v11, 12, v11\ns_mov_b32 s{sEX}, -1\ns_lshl_b32 s57, s3, 14')
        a(f'v_and_b32 v12, 7, v0\nv_lshl_add_u32 v{vHC}, v12, 4, v11\ns_mov_b32 s{sEX+1}, 0')
        a(f's_lshr_b32 s56, s{sL}, 5\ns_mul_i32 s56, s56, {18*4096}\ns_add_u32 s56, s56, s57\ns_and_b32 s57, s{sL}, 31\ns_lshl_b32 s57, s57, 7\ns_add_u32 s56, s56, s57\ns_add_u32 s56, s56, {WS_HC1}')
        a(f'v_lshlrev_b32 v{vLG}, 4, v{vG}\nv_add_u32 v{vLG}, {L_H}, v{vLG}')
    a('s_lshl_b32 s57, s3, 8')
    waddr('s57', False)
    a(f'v_and_b32 v11, 3, v{vI}\nv_lshrrev_b32 v12, 2, v{vI}\nv_lshl_add_u32 v11, v11, 2, v12\nv_lshlrev_b32 v11, 8, v11')
    a(f's_lshl_b32 s57, s3, 14\nv_add_u32 v11, s57, v11\nv_xor_b32 v12, v{vG}, v{vI}\nv_lshl_add_u32 v{vKr[0]}, v12, 4, v11')
    for kk in range(1, 4):
        a(f'v_xor_b32 v{vKr[kk]}, {kk*64}, v{vKr[0]}')
    wl = []
    def wload(j):
        if j < 4: return f'buffer_load_dwordx4 {vr(W+4*j)}, v{vWo}, {S(SB)}, s68 offen offset:{j*1152} nt'
        if j == 4: return f'buffer_load_dwordx4 {vr(W+16)}, v{vWe}, {S(SB)}, s69 offen nt'
        return f'buffer_load_dwordx4 {vr(W+4*j)}, v{vWo}, {S(SA)}, s68 offen offset:{(j-5)*1152} nt'
    nxt = 0
    def more(k, cp=0):
        nonlocal nxt
        for _ in range(k):
            P.cap(cp)
            if nxt < 16:
                vl.append(P.vm(f'buffer_load_dwordx4 {vr(V+4*nxt)}, v{vVo}, {S(SD)}, s55 offen nt'))
                if nxt < 15: nextblk()
            else:
                wl.append(P.vm(wload(nxt - 16)))
            nxt += 1
            trigger()
    more(s_after_v, capV)
    more(pre_s)
    assert nkv[0] >= t2 and nxt <= 12
    c('scores and softmax of this wave\'s 64 tokens for both query heads')
    a(f'v_lshrrev_b32 v13, 3, v{vI}\nv_lshlrev_b32 v11, 8, v13\nv_lshl_add_u32 v11, v{vG}, 4, v11\nv_add_u32 v11, {L_Q}, v11')
    a(f'v_lshlrev_b32 v13, 5, v13\ns_lshl_b32 s57, s3, 2\ns_add_u32 s57, s57, {L_ST}\nv_add_u32 v14, s57, v13\nv_mov_b32 v13, {L_QF}')
    def kread(T):
        for kk in range(4):
            a(f'ds_read_b128 {vr(KF+(T&1)*16+4*kk)}, v{vKr[kk]} offset:{T*4096}')
    P.wait(kl[-1])
    kread(0); kread(1)
    P.stamp('preQ')
    a(f'L_wq:\nds_read_b32 v12, v13')
    for kk in range(4):
        a(f'ds_read_b128 {vr(QB+4*kk)}, v11 offset:{kk*64}')
    a(f's_waitcnt lgkmcnt(0)\nv_cmp_eq_u32 vcc, 1, v12\ns_cbranch_vccnz L_wq_ok\ns_sleep 1')
    again('L_wq', 2)
    a('L_wq_ok:')
    P.stamp('q')
    for T in range(4):
        if T >= 2: a(f's_waitcnt lgkmcnt({[0, 0, 4, 0][T]})')
        for kk in range(4):
            mfma(SS + 4 * T, KF + (T & 1) * 16 + 4 * kk, QB + 4 * kk, kk == 0)
        if T + 2 < 4: kread(T + 2)
    more(1)
    vM, vL, vt = TMP, TMP + 1, TMP + 2
    a(f'v_max3_f32 v{vM}, v{SS}, v{SS+1}, v{SS+2}')
    for k in range(3, 11, 2):
        a(f'v_max3_f32 v{vM}, v{vM}, v{SS+k}, v{SS+k+1}')
    a('s_nop 3')
    for k in range(11, 15, 2):
        a(f'v_max3_f32 v{vM}, v{vM}, v{SS+k}, v{SS+k+1}')
    a(f'v_max_f32 v{vM}, v{vM}, v{SS+15}')
    xrow('v_max_f32', vM, vt)
    a(f's_mov_b32 s57, {CSC:#x}\nv_mul_f32 v{vt}, s57, v{vM}')
    for k in range(16):
        a(f'v_fma_f32 v{SS+k}, v{SS+k}, s57, -v{vt}')
    more(1)
    for k in range(16):
        a(f'v_exp_f32 v{SS+k}, v{SS+k}')
    more(1)
    pkadd(KF, SS + 4, SS); pkadd(KF + 4, SS + 12, SS + 8); pkadd(KF, KF + 4)
    a(f'v_add_f32 v{KF}, v{KF}, v{KF+1}\nv_add_f32 v{KF+2}, v{KF+2}, v{KF+3}\nv_add_f32 v{vL}, v{KF}, v{KF+2}')
    xrow('v_add_f32', vL, vt)
    a('s_mov_b64 exec, 0x101')
    a(f'ds_write2_b32 v14, v{vM}, v{vL} offset0:0 offset1:4')
    progress('st')
    for k in range(8):
        a(f'v_cvt_pk_bf16_f32 v{SS+k}, v{SS+2*k}, v{SS+2*k+1}')
    PK = SS
    assert nxt <= 16
    P.stamp('soft')
    c('the service waves enter the next code page at its first line, which starts the instruction prefetch for everything below')
    a('s_branch L_cont\n.p2align 12, 0\nL_stub:\ns_branch L_service\nL_cont:')
    a(f'v_lshrrev_b32 v11, 1, v{vG}\nv_lshlrev_b32 v11, 9, v11\nv_lshl_add_u32 v11, v{vI}, 5, v11\nv_and_b32 v12, 1, v{vG}\nv_lshl_add_u32 v11, v12, 4, v11')
    a(f's_lshl_b32 s57, s3, 10\ns_add_u32 s57, s57, {L_OP}\nv_add_u32 v11, s57, v11')
    vPo, vLP, vFA, vOP = 19, 20, 21, 22
    FW = SS + 8; R = V; CN = SS + 12
    def fw_wait():
        a(f'v_lshrrev_b32 v12, 2, v0\nv_lshlrev_b32 v12, 10, v12\nv_and_b32 v13, 3, v0\nv_lshl_add_u32 v{vPo}, v13, 4, v12')
        a(f's_lshr_b32 s57, s{sL}, 4\ns_and_b32 s58, s{sL}, 15\ns_lshl_b32 s57, s57, 14\ns_lshl_b32 s58, s58, 6\ns_add_u32 s58, s57, s58\ns_add_u32 s58, s58, {WS_HBO}')
        a(f'v_mov_b32 v{vLP}, {L_PW}\nv_lshrrev_b32 v12, 5, v0\nv_lshl_add_u32 v{vFA}, v12, 4, v{vLP}\nv_add_u32 v{vOP}, {L_OP}, v{vVo}\nv_mov_b32 v{CN+1}, 1')
        a(f's_and_b32 s53, s{sL}, 15\ns_lshl_b32 s53, s53, 2\ns_lshl_b64 s[72:73], 15, s53\nv_lshl_add_u32 v14, v13, 4, v{vLP}')
        a(f'L_wf:\nds_read_b32 v12, v{vLP} offset:{L_FF-L_PW}\nds_read_b128 {vr(FW)}, v{vFA} offset:{L_FW-L_PW}\ns_waitcnt lgkmcnt(0)')
        a(f'v_cmp_ne_u32 vcc, 0, v12\ns_cbranch_vccnz L_wf_ok\ns_sleep 1')
        again('L_wf', 2)
        a(f'L_wf_ok:\nv_readfirstlane_b32 s{sMD}, v12')
    pv = 0
    def pv_step():
        nonlocal pv
        n = pv
        if n == fw_at: fw_wait()
        Ax = A0 if n % 2 == 0 else A1
        buildA(Ax, PK + (n >> 1), n & 1)
        P.wait(vl[n])
        a('s_nop 0')
        mfma(ACC, Ax, V + 4 * n, n == 0)
        pv += 1
    HC = TMP
    def pv_finish():
        c('the wave that arrives last combines the four partial outputs and hands them to the group')
        a(f's_nop 7\nds_write_b128 v11, {vr(ACC)}')
        a(f's_mov_b64 exec, 1\nds_add_rtn_u32 v{CN}, v{vLP}, v{CN+1} offset:{L_CN-L_PW}\ns_mov_b64 exec, -1')
        for w in range(4): a(f'ds_read_b128 {vr(R+4*w)}, v{vOP} offset:{w*1024}')
        P.stamp('PV')
        a(f's_waitcnt lgkmcnt(4)\nv_readfirstlane_b32 s57, v{CN}\ns_cmp_lg_u32 s57, 3\ns_cbranch_scc1 L_notlast')
        mode_scc()
        a('s_waitcnt lgkmcnt(3)')
        for hh in (0, 2):
            a(f'v_pk_mul_f32 v[{R+hh}:{R+hh+1}], v[{R+hh}:{R+hh+1}], v[{FW}:{FW+1}] op_sel_hi:[1,0]')
        for w in range(1, 4):
            a(f's_waitcnt lgkmcnt({3-w})')
            sel = 'op_sel:[0,1,0] op_sel_hi:[1,1,1]' if w & 1 else 'op_sel_hi:[1,0,1]'
            f0 = FW + (w & 2)
            for hh in (0, 2):
                a(f'v_pk_fma_f32 v[{R+hh}:{R+hh+1}], v[{R+4*w+hh}:{R+4*w+hh+1}], v[{f0}:{f0+1}], v[{R+hh}:{R+hh+1}] {sel}')
        tag4(R)
        publish('L_pubO', R, vPo, 58)
        a(f's_mov_b64 exec, s[72:73]\nds_write_b128 v14, {vr(R)} offset:{L_OW-L_PW}')
        a(f's_mov_b64 exec, 1\nds_write_b32 v{vLP}, v{CN+1} offset:{L_GO-L_PW}\ns_mov_b64 exec, -1')
        a('L_notlast:\ns_mov_b32 s53, 0')
    while nxt < 25:
        cp = capV if nxt < 16 else capW
        while pv < 16 and pv < len(vl) and (P.n - 1 - vl[pv]) >= cp - 1:
            pv_step()
            if pv == 16: pv_finish()
        if pv == 16:
            a(f's_cmp_lg_u32 s53, 0\ns_cbranch_scc1 L_go{nxt}\nds_read_b32 v12, v{vLP} offset:{L_GO-L_PW}\ns_waitcnt lgkmcnt(0)\nv_readfirstlane_b32 s53, v12\ns_cmp_lg_u32 s53, 0\ns_cbranch_scc1 L_go{nxt}')
            P.cap(cp)
            a(f'L_go{nxt}:')
            more(1, capG)
        else:
            more(1, cp)
    P.stamp('alliss')
    assert pv == 16 and wl == list(range(P.n - 9, P.n))
    tail_st = P.st
    c('second layer (shared with the FFN service wave)')
    a('L_tail:')
    a(f'ds_read_b128 {vr(HC)}, v{vLG}\ns_waitcnt lgkmcnt(0)\nv_cmp_eq_u32 vcc, 0, v{HC+3}\ns_cbranch_vccz L_wh_ok\ns_sleep 1')
    again('L_tail', 2)
    a('L_wh_ok:')
    for rg in range(5):
        Ax = A0 if rg % 2 == 0 else A1
        buildA(Ax, HC + (rg >> 1), rg & 1)
        P.wait(wl[rg])
        a('s_nop 0')
        mfma(DA, Ax, W + 4 * rg, rg == 0)
    P.stamp('w2d')
    a(f'L_wo:\nds_read_b128 {vr(HC)}, v{vLG} offset:{L_OC-L_H}\ns_waitcnt lgkmcnt(0)')
    a(f'v_and_b32 v{HC+1}, v{HC+1}, v{HC+3}\nv_cmp_ne_u32 vcc, 1, v{HC+1}')
    if spec: buildA(A0, HC, 0)
    a('s_cbranch_vccz L_wo_ok')
    again('L_wo')
    a('L_wo_ok:')
    P.stamp('oc')
    if not spec: buildA(A0, HC, 0)
    buildA(A1, HC, 1)
    P.wait(wl[5]); mfma(DA, A0, W + 20, False)
    P.wait(wl[6]); mfma(DA, A1, W + 24, False)
    buildA(A0, HC + 2, 0); buildA(A1, HC + 2, 1)
    P.wait(wl[7]); mfma(DA, A0, W + 28, False)
    P.wait(wl[8]); mfma(DA, A1, W + 32, False)
    a(f's_mov_b64 exec, s[{sEX}:{sEX+1}]')
    mode_scc()
    a('s_nop 5')
    tag4(DA)
    publish('L_pubC', DA, vHC, 56)
    P.stamp('HCpub')
    dump_stamps(P, 0)
    a('L_end:\ns_endpgm')
    flush_far()

    sFP = 6; B2 = 124; vOC = 125; vL16 = 15
    def colmap(dst):
        a(f's_lshr_b32 s55, s54, 2\ns_lshl_b32 s55, s55, 7\ns_cmp_ge_u32 s54, 16')
        a('s_cselect_b32 s70, 0, 1\ns_cselect_b32 s71, 0, 64\ns_lshr_b32 s70, s54, s70\ns_and_b32 s70, s70, 1\ns_lshl_b32 s70, s70, 2\ns_add_u32 s55, s55, s70')
        a('s_and_b32 s70, s54, 1\ns_mul_i32 s70, s70, s71\ns_add_u32 s55, s55, s70')
        a(f'v_bfrev_b32 v11, v{vG}\nv_lshrrev_b32 v11, 30, v11\nv_and_b32 v12, 7, v0\nv_lshl_add_u32 v11, v12, 3, v11\nv_add_u32 v11, s55, v11\nv_lshlrev_b32 v{dst}, 1, v11')
    VMASK = 0xaa55aa55
    c('================ service waves: clear the LDS flags ================')
    a('L_service:')
    a(f'v_and_b32 v0, 63, v0\nv_mov_b32 v12, 0\nv_lshlrev_b32 v11, 2, v0\nv_add_u32 v11, {L_PW}, v11\nds_write_b32 v11, v12')
    a(f's_waitcnt lgkmcnt(0)\ns_load_dword s{sT}, s[30:31], 0\ns_barrier')
    a(f'v_lshrrev_b32 v{vG}, 4, v0\nv_lshlrev_b32 v{vL16}, 4, v0\nv_mov_b32 v29, {L_PW}\nv_and_b32 v20, 3, v0')
    srd(SW, 30, 1 << 30)
    consts()
    a(f's_mov_b32 s{sMK}, 0xffffff00')
    a('s_cmp_eq_u32 s3, 5\ns_cbranch_scc1 L_ffn')

    c('================ attention service wave (4) ================')
    P = Path(a, stamps)
    QP = 84; ID = 108; IDM = 110
    DA4 = 136; R = 144
    FW = R + 20; CO = 100; CS = 104; OC = 128
    vQo = 18
    vCo, vCs, vID, vWT, vONE = 113, 114, 115, 116, 118
    sQ, sCO, sCS, sPA, sID, sPS, sC1, sFL, sXC = 73, 53, 58, 68, 14, 15, 29, 7, 28
    vFL = 24; AV = 120; sHX = 9
    a(f's_getreg_b32 s{sXC}, hwreg(HW_REG_XCC_ID, 0, 4)\nv_mov_b32 v{vONE}, 1')
    a(f's_lshl_b32 s52, s{sL}, {idsh}\ns_add_u32 s52, s52, {WS_ID}\ns_and_b32 s{sID}, s52, {(0xffffffe0 << idsh) & 0xffffffff:#x}\nv_lshlrev_b32 v{vID}, {idsh}, v0\nv_mov_b32 v25, 0')
    c('die record {tag ^ die, ~tag ^ die}, written through')
    a(f's_waitcnt lgkmcnt(0)\ns_add_u32 s{sT}, s{sT}, 0x01010101\nv_mov_b32 v{vT}, s{sT}\nv_xor_b32 v{IDM}, s{sXC}, v{vT}\nv_not_b32 v{IDM+1}, v{IDM}')
    a(f's_setprio 3\ns_mov_b64 exec, 1\nbuffer_store_dwordx2 v[{IDM}:{IDM+1}], v25, {S(SW)}, s52 offen sc1\ns_mov_b64 exec, -1\ns_setprio 0')
    a(f'v_add_u32 v12, {WS_HA2 - WS_HA1 - 512}, v{vL16}\nv_cmp_gt_u32 vcc, 32, v0\ns_lshl_b32 s57, s{sL}, {8 if ha2 else 9}')
    tile('s55', 's54')
    a(f's_and_b32 s54, s{sL}, 1\ns_lshl_b32 s54, s54, 16\ns_lshl_b32 s55, s55, 11\ns_add_u32 s54, s54, s55\ns_bfe_u32 s55, s{sL}, 0x20001\ns_lshl_b32 s55, s55, 9\ns_add_u32 s54, s54, s55')
    a(f's_lshr_b32 s55, s{sL}, 4\ns_lshl_b32 s{sQ}, s55, 12')
    a(f'v_add_u32 v12, s57, v12\nv_add_u32 v13, s54, v{vL16}\ns_mov_b32 s{sPA}, {WS_HA1}\ns_add_u32 s{sQ}, s{sQ}, {WS_HA1}')
    a(f'v_cndmask_b32 v19, v12, v13, vcc')
    a(f'v_add_u32 v30, {L_OP}, v{vL16}')
    a(f'v_lshrrev_b32 v11, 5, v0\nv_lshlrev_b32 v11, 11, v11\nv_and_b32 v12, 31, v0\nv_lshl_add_u32 v{vQo}, v12, 4, v11')
    a(f'v_lshrrev_b32 v11, 5, v0\nv_lshlrev_b32 v11, 8, v11\nv_lshl_add_u32 v11, v{vI}, 4, v11\nv_and_b32 v12, 1, v{vG}\nv_lshl_add_u32 v11, v12, 3, v11')
    a(f'v_add_u32 v26, {L_Q}, v11')
    a(f's_lshr_b32 s54, s{sL}, 4')
    a(f's_lshl_b32 s{sCO}, s{sL}, 10\ns_add_u32 s{sCO}, s{sCO}, {WS_HBO}')
    a(f's_lshl_b32 s{sCS}, s54, 8\ns_add_u32 s{sCS}, s{sCS}, {WS_HBS}')
    a(f'v_lshlrev_b32 v11, 6, v{vI}\nv_lshl_add_u32 v{vCo}, v{vG}, 4, v11\nv_lshlrev_b32 v{vCs}, 4, v{vI}')
    a(f's_and_b32 s54, s{sL}, 31\ns_lshr_b32 s{sC1}, s{sL}, 5\ns_mul_i32 s{sC1}, s{sC1}, 18\ns_add_u32 s{sC1}, s{sC1}, s54\ns_lshl_b32 s{sC1}, s{sC1}, 12\ns_add_u32 s{sC1}, s{sC1}, {WS_HC1}')
    a(f's_lshl_b32 s{sPS}, s{sL}, 4\ns_add_u32 s{sPS}, s{sPS}, {WS_HBS}')
    a(f'v_lshrrev_b32 v21, 5, v0\nv_lshl_add_u32 v21, v21, 5, v29')
    a(f'v_lshl_add_u32 v27, v{vG}, 4, v29\nv_mov_b32 v{OC+1}, 1\nv_mov_b32 v{OC+3}, 1')
    colmap(vOC)
    a(f'v_lshlrev_b32 v23, 3, v0\ns_lshl_b32 s{sFL}, s54, 7\ns_add_u32 s{sFL}, s{sFL}, {WS_FL}\nv_mov_b32 v{AV}, 0\nv_mov_b32 v{AV+1}, 0x3ff00000')
    srd(SD, 26, 1152)
    flload = f'buffer_load_dword v{vFL}, v25, {S(SW)}, s{sFL} offen sc1'
    idload = f'buffer_load_dwordx2 v[{ID}:{ID+1}], v{vID}, {S(SW)}, s{sID} offen sc1'
    a(f's_mov_b32 s{sMD}, 0\nv_not_b32 v{vFL}, v{vT}\ns_setprio 3')
    parts = '\n'.join(f'ds_read_b128 {vr(R+4*w)}, v30 offset:{w*1024}' for w in range(4))
    waitpw('L_w1', stages['l1'], parts)
    pkadd(R, R + 4); pkadd(R + 8, R + 12); pkadd(DA4, R + 8, R)
    if ha2:
        c('lanes 32..47 also take the odd rows of the extra columns (lanes 48..63); slots 24..31 have none')
        for k in range(4): a(f'v_mov_b32 v{R+k}, v{DA4+k}\nv_mov_b32 v{R+4+k}, v{DA4+k}')
        a(f's_and_b32 s54, s{sL}, 31\ns_cmp_lt_u32 s54, 24\ns_cselect_b32 s{sHX}, 0xffff, 0')
        for k in range(4): a(f'v_permlane16_swap_b32 v{R+k}, v{R+4+k}')
        a('s_mov_b32 exec_lo, 0')
        pkadd(DA4, R + 4, R)
        a('s_mov_b32 exec_lo, -1')
    tag4(DA4)
    if ha2: a(f's_mov_b32 exec_hi, s{sHX}')
    a(f'buffer_store_dwordx4 {vr(DA4)}, v19, {S(SW)}, s{sPA} offen')
    P.stamp('HApub')
    a(f's_mov_b32 exec_hi, 0\n{idload}\ns_mov_b32 exec_hi, -1')
    def idstep(lab):
        a(f's_cmp_lg_u32 s{sMD}, 0\ns_cbranch_scc1 {lab}_x\ns_mov_b32 exec_hi, 0')
        if not force_slow:
            a(f'v_cmp_ne_u64 vcc, v[{ID}:{ID+1}], v[{IDM}:{IDM+1}]\ns_cbranch_vccnz {lab}_n\ns_mov_b32 s{sMD}, 1\ns_branch {lab}_x')
            a(f'{lab}_n:\ns_mov_b64 exec, vcc\nv_xor_b32 v11, v{ID}, v{vT}\nv_xor_b32 v12, v{ID}, v{ID+1}\nv_cmp_gt_u32 vcc, 16, v11\nv_cmp_eq_u32 s[70:71], -1, v12\ns_mov_b32 exec_lo, -1\ns_and_b64 vcc, vcc, s[70:71]')
            a(f's_cbranch_scc1 {lab}_s\n{idload}\ns_branch {lab}_x')
        a(f'{lab}_s:\ns_mov_b32 exec_hi, ' + (f's{sHX}' if ha2 else '-1') + f'\ns_mov_b32 s{sMD}, 2\ns_add_u32 s{sPA}, s{sPA}, {WS_ALT}\ns_add_u32 s{sQ}, s{sQ}, {WS_ALT}')
        a(f'buffer_store_dwordx4 {vr(DA4)}, v19, {S(SW)}, s{sPA} offen sc1')
        a(f'{lab}_x:\ns_mov_b32 exec_hi, -1')
    qitems = [(QP + 4 * p, f'buffer_load_dwordx4 {vr(QP+4*p)}, v{vQo}, {S(SW)}, s{sQ} offen offset:{p*512} sc1', None) for p in range(4)]
    sload = f'buffer_load_dwordx4 {vr(CS)}, v{vCs}, {S(SW)}, s{sCS} offen sc1'
    oload = f'buffer_load_dwordx4 {vr(CO)}, v{vCo}, {S(SW)}, s{sCO} offen sc1'
    c('the two gathers of the end are read once now: that brings their lines into the cache and marks the registers invalid')
    if pre_early: a(f'{oload}\n{sload}')
    waitpw('L_w2', stages['t1'])
    if not pre_early: a(f'{oload}\n{sload}')
    issue(qitems)
    P.stamp('t1')
    a('s_waitcnt vmcnt(6)')
    idstep('L_id0')
    poll('L_pollQ', qitems, each=idstep)
    P.stamp('qin')
    untag(R, QP, 16)
    pkadd(R, R + 4); pkadd(R + 8, R + 12); pkadd(R, R + 8)
    a(f'v_cvt_pk_bf16_f32 v{R}, v{R}, v{R+1}\nv_cvt_pk_bf16_f32 v{R+1}, v{R+2}, v{R+3}')
    a(f'ds_write_b64 v26, v[{R}:{R+1}]\ns_mov_b64 exec, 1\nds_write_b32 v29, v{vONE} offset:{L_QF-L_PW}\ns_mov_b64 exec, -1')
    a(f'L_idfin:\ns_cmp_lg_u32 s{sMD}, 0\ns_cbranch_scc1 L_idok\ns_waitcnt vmcnt(0)')
    idstep('L_idfin_id')
    again('L_idfin', 8)
    a(f's_mov_b32 s{sMD}, 2\nL_idok:')
    a(f'v_mov_b32 v{vONE}, s{sMD}\ns_mov_b64 exec, 1\nds_write_b32 v29, v{vONE} offset:{L_MD-L_PW}\ns_mov_b64 exec, -1')
    a(f's_mov_b32 s57, {CSC:#x}\ns_bitcmp1_b32 s{sL}, 3\ns_cselect_b64 s[54:55], -1, 0')
    c('softmax statistics of this workgroup (lane half = head)')
    waitpw('L_w4', stages['st'], f'ds_read_b128 {vr(R)}, v21 offset:{L_ST-L_PW}\nds_read_b128 {vr(R+4)}, v21 offset:{L_ST-L_PW+16}')
    SG = R + 8
    a(f'v_max3_f32 v{SG}, v{R}, v{R+1}, v{R+2}\nv_max_f32 v{SG}, v{SG}, v{R+3}\nv_and_b32 v{SG}, s{sMK}, v{SG}')
    for w in range(4): a(f'v_sub_f32 v{R+w}, v{R+w}, v{SG}')
    for w in range(4): a(f'v_mul_f32 v{R+w}, s57, v{R+w}')
    for w in range(4): a(f'v_exp_f32 v{FW+w}, v{R+w}')
    a(f'v_mov_b32 v{SG+2}, v{SG}\nv_mul_f32 v{SG+1}, v{FW}, v{R+4}')
    for w in range(1, 4): a(f'v_fmac_f32 v{SG+1}, v{FW+w}, v{R+4+w}')
    a(f'v_mov_b32 v{SG+3}, v{SG+1}\ns_nop 1\nv_permlane32_swap_b32 v{SG}, v{SG+2}\nv_permlane32_swap_b32 v{SG+1}, v{SG+3}')
    tag4(SG)
    a('s_mov_b64 exec, 1')
    mode_scc()
    publish('L_pubS', SG, 25, sPS)
    a('s_mov_b64 exec, -1')
    P.stamp('STpub')
    a(f'v_lshrrev_b32 v12, 5, v0\nv_lshl_add_u32 v12, v12, 4, v29\ns_mov_b32 exec_lo, 1\ns_mov_b32 exec_hi, 1')
    a(f'ds_write_b128 v12, {vr(FW)} offset:{L_FW-L_PW}\ns_mov_b64 exec, -1\nv_not_b32 v{R}, v{vT}\nv_lshrrev_b32 v{R+1}, 8, v{R}\nv_lshrrev_b32 v{R+2}, 16, v{R}\nv_lshrrev_b32 v{R+3}, 24, v{R}')
    a(f'ds_write_b128 v27, {vr(R)} offset:{L_OW-L_PW}\ns_mov_b64 exec, 1\nds_write_b32 v29, v{vONE} offset:{L_FF-L_PW}\ns_mov_b64 exec, -1')
    a(f'L_wg:\nds_read_b64 v[16:17], v29 offset:{L_G-L_PW}\ns_waitcnt lgkmcnt(0)\nv_cmp_eq_u32 vcc, 1, v17\ns_cbranch_vccnz L_wg_ok\ns_sleep 1')
    again('L_wg', 2)
    a('L_wg_ok:')
    c('gather the group\'s statistics and partial outputs; the own piece comes through LDS')
    a(f's_and_b32 s70, s{sL}, 15\ns_lshl_b32 s72, 0x00010001, s70\ns_mov_b32 s73, s72')
    waitpw('L_w5', stages['t3'])
    a('s_branch L_g1\nL_g:\ns_waitcnt vmcnt(0)\nL_g1:')
    bad('s[68:69]', CO)
    a(f's_andn2_b64 exec, s[68:69], s[72:73]\ns_cbranch_execz L_g2\n{oload}\nL_g2:\ns_mov_b64 exec, -1')
    bad('vcc', CS)
    a(f's_cbranch_vccz L_g5\ns_mov_b64 exec, vcc\n{sload}\ns_mov_b64 exec, -1\n{flload}')
    again('L_g', 4)
    a('L_g5:')
    a(f'v_cndmask_b32 v11, v{CS}, v{CS+2}, s[54:55]\nv_cndmask_b32 v12, v{CS+1}, v{CS+3}, s[54:55]')
    untag(11, 11, 2)
    a('v_mov_b32 v13, v11')
    rowred('v_max_f32', [13])
    a(f'v_sub_f32 v11, v11, v13\nv_mul_f32 v11, s57, v11\nv_exp_f32 v11, v11\ns_mov_b32 s70, {pipe}')
    a('v_mul_f32 v12, v12, v11\nv_mul_f32 v11, v11, v16')
    rowred('v_add_f32', [12])
    a(f'v_rcp_f32 v12, v12\ns_nop 0\nv_mul_f32 v{vWT}, v11, v12')
    P.stamp('sin')
    c('two gathers in flight, offset in time (a valid lane never changes, so both may share the registers)')
    def wmul():
        untag(R, CO)
        a(f'v_pk_mul_f32 v[{R}:{R+1}], v[{R}:{R+1}], v[{vWT}:{vWT+1}] op_sel_hi:[1,0]\nv_pk_mul_f32 v[{R+2}:{R+3}], v[{R+2}:{R+3}], v[{vWT}:{vWT+1}] op_sel_hi:[1,0]')
    def own_and_check(lab):
        a(f's_and_b64 exec, s[68:69], s[72:73]\ns_cbranch_execz {lab}\nds_read_b128 {vr(CO)}, v27 offset:{L_OW-L_PW}\ns_waitcnt lgkmcnt(0)\n{lab}:\ns_mov_b64 exec, -1')
        bad('vcc', CO)
        if spec: wmul()
        a('s_cbranch_vccz L_gdone\ns_mov_b64 s[68:69], vcc')
    a('L_p0:')
    own_and_check('L_p1')
    a('s_sleep 1\ns_sub_u32 s70, s70, 1\ns_cbranch_scc0 L_p0')
    a(f'L_p2:\ns_andn2_b64 exec, s[68:69], s[72:73]\ns_cbranch_execz L_p3\n{oload}\ns_waitcnt vmcnt(1)\nL_p3:')
    own_and_check('L_p4')
    again('L_p2', 2)
    a('L_gdone:')
    P.stamp('oin')
    if not spec:
        wmul(); a('s_nop 0')
    rowred('v_add_f32', [R, R + 1, R + 2, R + 3])
    a(f's_mov_b32 exec_lo, 0x00010001\ns_mov_b32 exec_hi, 0x00010001\nv_cvt_pk_bf16_f32 v{OC}, v{R}, v{R+1}\nv_cvt_pk_bf16_f32 v{OC+2}, v{R+2}, v{R+3}')
    a(f'ds_write_b128 v27, {vr(OC)} offset:{L_OC-L_PW}')
    a('s_mov_b64 exec, -1\ns_setprio 0')
    P.stamp('ocw')
    a(f's_and_b32 s54, s{sL}, 31\ns_cmp_ge_u32 s54, 18\ns_cbranch_scc1 L_att_done')
    c('level 1: sum the 32 partials of this domain for 32 output columns')
    C = 32
    a(f's_lshl_b32 s56, s54, 9\ns_add_u32 s56, s56, {WS_AC}')
    a(f'L_fl:\nv_cmp_ne_u32 vcc, v{vFL}, v{vT}\ns_cbranch_vccz L_fl_ok\n{flload}\ns_waitcnt vmcnt(0)')
    again('L_fl', 4)
    a('L_fl_ok:')
    for k in range(4): a(f's_bfe_u32 s{68+k}, s{sT}, {0x80000 + 8*k:#x}')
    def cround(base):
        for i in range(4):
            a(f's_waitcnt vmcnt({7-i})')
            b = base + 4 * i
            for k in range(4): a(f'v_xor_b32 v{(C if i == 0 else b)+k}, s{68+k}, v{b+k}')
            if i == 0: a(f'v_or3_b32 v11, v{C}, v{C+1}, v{C+2}\nv_or_b32 v11, v11, v{C+3}')
            else: a(f'v_or3_b32 v11, v11, v{b}, v{b+1}\nv_or3_b32 v11, v11, v{b+2}, v{b+3}')
            if i == 3: a('v_cmp_ne_u32_sdwa vcc, v11, v25 src0_sel:BYTE_0 src1_sel:DWORD')
            if i: pkadd(C, b)
        a('s_cbranch_vccz L_Cdone')
    def cissue(base):
        for i in range(4): a(f'buffer_load_dwordx4 {vr(base+4*i)}, v{vL16}, {S(SW)}, s{sC1} offen offset:{i*1024} sc1')
    cissue(48)
    a('L_pollC:')
    cissue(64); cround(48)
    cissue(48); cround(64)
    again('L_pollC', 8)
    a('L_Cdone:')
    a(f's_nop 0\nv_permlane32_swap_b32 v{C}, v{C+1}\nv_permlane32_swap_b32 v{C+2}, v{C+3}')
    a(f'v_add_f32 v{C}, v{C}, v{C+1}\nv_add_f32 v{C+2}, v{C+2}, v{C+3}\ns_nop 1')
    a(f'v_permlane16_swap_b32 v{C}, v{C+2}\nv_add_f32 v{C}, v{C}, v{C+2}\ns_nop 1')
    a(f'v_add_f32_dpp v{C}, v{C}, v{C} row_ror:8 row_mask:0xf bank_mask:0xf')
    c('level 2: exact (f64) sum over the 8 domains; whoever arrives last at a {sum, count} pair writes that output')
    a(f's_mov_b32 exec_lo, {VMASK:#x}\ns_mov_b32 exec_hi, {VMASK:#x}\nv_cvt_f64_f32 v[{AV}:{AV+1}], v{C}\ns_mov_b64 exec, -1')
    a(f'buffer_atomic_add_f64 v[{AV}:{AV+1}], v23, {S(SW)}, s56 offen sc0')
    P.stamp('c2pub')
    a(f'v_cvt_f64_f32 v[{C+2}:{C+3}], v{C}\ns_mov_b32 s70, {VMASK:#x}\ns_mov_b32 s71, s70\ns_mov_b32 s57, 0x401c0000\ns_waitcnt vmcnt(0)')
    a(f'v_mov_b32_dpp v11, v{AV+1} quad_perm:[1,0,3,2] row_mask:0xf bank_mask:0xf\nv_add_f64 v[{C+2}:{C+3}], v[{C+2}:{C+3}], v[{AV}:{AV+1}]')
    a(f'v_cmp_eq_u32 vcc, s57, v11\nv_cvt_f32_f64 v{C}, v[{C+2}:{C+3}]\ns_and_b64 exec, vcc, s[70:71]\ns_cbranch_execz L_att_done')
    a(f'v_cvt_pk_bf16_f32 v{C}, v{C}, v{C}\nbuffer_store_short v{C}, v{vOC}, {S(SD)}, 0 offen')
    c('every wave of the launch has read the epoch by now: advance it')
    a(f's_cmp_lg_u32 s54, 0\ns_cbranch_scc1 L_att_done\ns_and_b64 exec, exec, 1\ns_cbranch_execz L_att_done')
    a(f'buffer_store_dword v{vT}, v25, {S(SW)}, 0 offen')
    a('L_att_done:')
    dump_stamps(P, 4)
    a('s_endpgm')
    flush_far()

    c('================ FFN service wave (5): gate, hidden activations, half-width column tile ================')
    a('L_ffn:')
    P = Path(a, stamps)
    XG = 128; HM = 104; HE = 108; B1 = 123; PRE = 144
    vHo, vHo2 = 21, 22
    sHM, sHE = 72, 73
    if touch:
        c('look up the pages that are used later in the stream')
        a(f's_lshr_b32 s54, s{sL}, 4\ns_lshl_b32 s54, s54, 24\ns_and_b32 s55, s{sL}, 15\ns_lshl_b32 s55, s55, 16\ns_add_u32 s54, s54, s55\ns_add_u32 s54, s54, {61440*256}')
        a(f's_mul_i32 s55, s{sL}, {16*1152}\ns_mul_i32 s56, s{sL}, {2*1152}\ns_add_u32 s56, s56, {4096*1152}\ns_mov_b64 exec, 1')
        for ptr, off in ((6, 54), (8, 54), (12, 55), (20, 55), (20, 56)):
            a(f'v_mov_b32 v13, s{off}\nglobal_load_dword v{PRE+1}, v13, s[{ptr}:{ptr+1}] nt')
        a('s_mov_b64 exec, -1')
    c('bring the rest of the code into the cache')
    a(f's_getpc_b64 s[70:71]\ns_and_b32 s70, s70, 0xfffff000\ns_sub_u32 s70, s70, 0x1000\ns_subb_u32 s71, s71, 0\nv_lshlrev_b32 v12, 7, v0')
    a(f'global_load_dword v{PRE}, v12, s[70:71]')
    srd(SA, 4, 1152); srd(SB, 24, 1152)
    a(f'buffer_load_dwordx4 {vr(XG)}, v{vL16}, {S(SA)}, 0 offen\nbuffer_load_dwordx4 {vr(XG+4)}, v{vL16}, {S(SA)}, 0 offen offset:1024')
    a(f'buffer_load_dwordx4 {vr(XG+8)}, v{vL16}, {S(SB)}, 0 offen\nbuffer_load_dwordx4 {vr(XG+12)}, v{vL16}, {S(SB)}, 0 offen offset:1024')
    a(f's_lshl_b32 s54, s{sL}, 4\ns_lshl_b32 s55, s{sL}, 1\ns_add_u32 s55, s55, {4096-16}\nv_add_u32 v11, s54, v0\nv_add_u32 v12, s55, v0')
    a('v_cmp_gt_u32 vcc, 16, v0\ns_nop 1\nv_cndmask_b32 v11, v12, v11, vcc\nv_lshlrev_b32 v11, 1, v11')
    srd(SC, 18, 4608 * 2)
    a(f'buffer_load_ushort v{B1}, v11, {S(SC)}, 0 offen')
    a(f's_and_b32 s54, s{sL}, 31\ns_sub_u32 s54, s54, 18\ns_lshl_b32 s54, s54, 3\ns_lshr_b32 s55, s{sL}, 5\ns_add_u32 s54, s54, s55\ns_mov_b32 s{sFP}, s54')
    colmap(vOC)
    srd(SD, 22, 1152)
    a(f'buffer_load_ushort v{B2}, v{vOC}, {S(SD)}, 0 offen')
    selectors()
    a(f's_lshr_b32 s54, s{sL}, 3\ns_lshl_b32 s54, s54, 11\ns_and_b32 s55, s{sL}, 7\ns_lshl_b32 s55, s55, 5\ns_add_u32 s{sHM}, s54, s55\ns_add_u32 s{sHM}, s{sHM}, {WS_HA1 + 32*2048}')
    a(f'v_bfe_u32 v11, v0, 2, 1\nv_lshlrev_b32 v11, 8, v11\nv_bfe_u32 v12, v0, 3, 1\nv_lshl_add_u32 v11, v12, 4, v11\nv_lshl_add_u32 v{vHo}, v20, 9, v11')
    a(f's_lshr_b32 s54, s{sL}, 5\ns_lshl_b32 s54, s54, {13 if ha2 else 14}\ns_bfe_u32 s55, s{sL}, 0x10001\ns_lshl_b32 s55, s55, 7\ns_add_u32 s54, s54, s55\ns_bfe_u32 s55, s{sL}, 0x30002\ns_lshl_b32 s55, s55, 4\ns_add_u32 s{sHE}, s54, s55\ns_add_u32 s{sHE}, s{sHE}, {WS_HA2}')
    a(f'v_lshlrev_b32 v{vHo2}, 8, v0')
    a(f's_and_b32 s54, s{sL}, 31\ns_lshr_b32 s53, s{sL}, 5\ns_mul_i32 s53, s53, 18\ns_add_u32 s53, s53, s54\ns_lshl_b32 s53, s53, 12\ns_add_u32 s53, s53, {WS_HC1}')
    a(f's_cmp_ge_u32 s54, 18\ns_cselect_b32 s53, {OOB}, s53')
    a('s_waitcnt lgkmcnt(0)')
    a(f's_add_u32 s{sT}, s{sT}, 0x01010101\nv_mov_b32 v{vT}, s{sT}')
    c('gate g = sigmoid(sum(x * gate_w))')
    G = 26
    a(f's_waitcnt vmcnt(0)\nv_mov_b32 v{G}, 0')
    for k in range(8):
        a(f'v_lshlrev_b32 v11, 16, v{XG+k}\nv_lshlrev_b32 v12, 16, v{XG+8+k}\nv_and_b32 v13, 0xffff0000, v{XG+k}\nv_and_b32 v14, 0xffff0000, v{XG+8+k}')
        a('v_mul_f32 v11, v11, v12\nv_mul_f32 v13, v13, v14\nv_cvt_pk_bf16_f32 v11, v11, v13')
        a(f'v_lshlrev_b32 v12, 16, v11\nv_and_b32 v13, 0xffff0000, v11\nv_add_f32 v{G}, v{G}, v12\nv_add_f32 v{G}, v{G}, v13')
    rowred('v_add_f32', [G])
    xrow('v_add_f32', G, 11)
    a(f'v_cvt_pk_bf16_f32 v{G}, v{G}, v{G}\nv_and_b32 v{G}, 0xffff0000, v{G}')
    a(f'v_mul_f32 v{G}, {f2u(-LOG2E):#x}, v{G}\nv_exp_f32 v{G}, v{G}\ns_nop 0\nv_add_f32 v{G}, 1.0, v{G}\nv_rcp_f32 v{G}, v{G}\nv_mov_b32 v{G+1}, 1')
    a(f'v_cvt_pk_bf16_f32 v{G}, v{G}, v{G}\nv_and_b32 v{G}, 0xffff0000, v{G}')
    a(f'v_sub_f32 v28, 1.0, v{G}\nv_cvt_pk_bf16_f32 v28, v28, v28\nv_and_b32 v28, 0xffff0000, v28')
    a(f's_mov_b64 exec, 1\nds_write_b64 v29, v[{G}:{G+1}] offset:{L_G-L_PW}\ns_mov_b64 exec, -1')
    a(f'v_lshlrev_b32 v{B2}, 16, v{B2}\nv_mul_f32 v{B2}, v28, v{B2}')
    c('initialise the accumulators of one piece with (1-g)*b2, then raise its flag')
    a(f's_cmp_ge_u32 s{sFP}, 18\ns_cbranch_scc1 L_noinit')
    a(f'v_mov_b32 v12, 0\nv_mov_b32 v13, 0\ns_mov_b32 exec_lo, {VMASK:#x}\ns_mov_b32 exec_hi, {VMASK:#x}\nv_cvt_f64_f32 v[12:13], v{B2}\ns_mov_b64 exec, -1')
    a(f'v_lshlrev_b32 v11, 3, v0\ns_lshl_b32 s54, s{sFP}, 9\ns_add_u32 s54, s54, {WS_AC}\ns_lshl_b32 s55, s{sFP}, 7\ns_add_u32 s55, s55, {WS_FL}')
    a(f'buffer_store_dwordx2 v[12:13], v11, {S(SW)}, s54 offen sc1\ns_waitcnt vmcnt(0)\ns_mov_b64 exec, 1\nbuffer_store_dword v{vT}, v11, {S(SW)}, s55 offen sc1\ns_mov_b64 exec, -1')
    a('L_noinit:')
    P.stamp('gate')
    hitems = [(HE, f'buffer_load_dwordx4 {vr(HE)}, v{vHo2}, {S(SW)}, s{sHE} offen sc1', 's[8:9]'),
              (HM, f'buffer_load_dwordx4 {vr(HM)}, v{vHo}, {S(SW)}, s{sHM} offen sc1', '0xffff')]
    a('s_mov_b32 s8, 0xffffff\ns_mov_b32 s9, 0' if ha2 else 's_mov_b32 s8, -1\ns_mov_b32 s9, 0xffff')
    for k in range(4): a(f'v_mov_b32 v{HE+k}, 0')
    waitpw('L_f2', stages['t2'], sleep=2)
    issue(hitems)
    P.stamp('t2')
    a(f'L_wm:\nds_read_b32 v16, v29 offset:{L_MD-L_PW}\ns_waitcnt lgkmcnt(0)\nv_cmp_ne_u32 vcc, 0, v16\ns_cbranch_vccnz L_wm_ok\ns_sleep 2')
    again('L_wm', 2)
    a(f'v_mov_b32 v16, 2\nL_wm_ok:\ns_nop 0\nv_readfirstlane_b32 s{sMD}, v16')
    mode_scc()
    a(f's_cselect_b32 s54, 0, {WS_ALT}\ns_add_u32 s{sHE}, s{sHE}, s54\ns_add_u32 s{sHM}, s{sHM}, s54')
    poll('L_pollH', hitems)
    P.stamp('hin')
    c('h = (1-g) * gelu(x @ w1 + b1) for the 18 hidden columns of this workgroup')
    untag(HM, HM, 8)
    for qp in ('[1,0,3,2]', '[2,3,0,1]'):
        for k in range(4):
            a(f'v_add_f32_dpp v{HM+k}, v{HM+k}, v{HM+k} quad_perm:{qp} row_mask:0xf bank_mask:0xf')
    a(f's_bitcmp1_b32 s{sL}, 0\ns_cselect_b64 vcc, -1, 0')
    a(f'v_cndmask_b32 v{HE}, v{HE}, v{HE+2}, vcc\nv_cndmask_b32 v{HE+1}, v{HE+1}, v{HE+3}, vcc')
    rowred('v_add_f32', [HE, HE + 1])
    xrow('v_add_f32', HE, 11); xrow('v_add_f32', HE + 1, 11)
    a(f'v_mov_b32 v12, v{HM}')
    for k in range(1, 4):
        a(f'v_cmp_eq_u32 vcc, {k}, v20\ns_nop 1\nv_cndmask_b32 v12, v12, v{HM+k}, vcc')
    for k in range(2):
        a(f'v_cmp_eq_u32 vcc, {16+k}, v0\ns_nop 1\nv_cndmask_b32 v12, v12, v{HE+k}, vcc')
    a(f'v_cvt_pk_bf16_f32 v12, v12, v12\nv_and_b32 v12, 0xffff0000, v12\nv_lshlrev_b32 v13, 16, v{B1}\nv_add_f32 v12, v12, v13')
    a('v_cvt_pk_bf16_f32 v12, v12, v12\nv_and_b32 v12, 0xffff0000, v12')
    k1 = -2.0 * (2.0 / 3.141592653589793) ** 0.5 * LOG2E
    a(f'v_mul_f32 v13, v12, v12\nv_mov_b32 v14, {f2u(k1):#x}\ns_mov_b32 s57, {f2u(k1*0.044715):#x}\nv_fma_f32 v13, v13, s57, v14\nv_mul_f32 v13, v13, v12')
    a('v_exp_f32 v13, v13\nv_mul_f32 v12, v12, v28\nv_add_f32 v13, 1.0, v13\nv_rcp_f32 v13, v13\ns_nop 0\nv_mul_f32 v12, v12, v13')
    a('v_cvt_pk_bf16_f32 v12, v12, v12')
    a('v_cmp_lt_u32 vcc, 17, v0\ns_nop 1\nv_cndmask_b32 v12, v12, 0, vcc')
    a(f'v_lshrrev_b32 v11, 2, v0\nv_lshlrev_b32 v11, 4, v11\nv_lshl_add_u32 v11, v20, 1, v11\nv_lshlrev_b32 v13, 4, v20\nv_add_u32 v13, {L_H+8}, v13')
    a(f'v_cmp_gt_u32 vcc, 16, v0\nv_add_u32 v11, {L_H}, v11\ns_nop 0\nv_cndmask_b32 v11, v13, v11, vcc')
    a('s_mov_b64 exec, 0xfffff\nds_write_b16 v11, v12\ns_mov_b64 exec, 15\nds_write_b32 v13, v16 offset:4\ns_mov_b64 exec, -1')
    P.stamp('hdone')
    a('s_movk_i32 s57, 1024')
    waddr('s57', True)
    waitpw('L_f3', stages['t3'], sleep=2)
    c('lines of the level-1 gather into the cache, then the half-width tile')
    for i in range(4): a(f'buffer_load_dwordx4 {vr(PRE+4*i)}, v{vL16}, {S(SW)}, s53 offen offset:{i*1024} sc1')
    for j in range(9): a(wload(j))
    while P.st < tail_st: P.stamp('t3')
    names[5] = P.names + names.get(0, [])[len(P.names):]
    a('s_branch L_tail')
    a('.fill 1024, 4, 0xbf810000')
    hdr = open('gated_mix__sliding_block_cached__dense_activation_gelu__decode.s.ref').read().split('; Override launch')[0]
    if stamps: hdr += f'; stamps w0: {" ".join(names[0])}\n'
    hdr += DOC
    txt = hdr + HDR.format(gx=256, bx=64 * NW, lds=LDS_BYTES, name=NAME, pre=ALIGN4K) + a.text() + FTR.format(name=NAME, vgpr=NV, sgpr=102, accum=NV)
    open(path, 'w').write(txt)
    build(path, NAME)
    print('built', path, stages)

if __name__ == '__main__':
    gen('final.s')
```
